```python
import torch

def _softmax(x, axis=-1):
    return torch.softmax(x, dim=axis)
def _gelu(x):
    return torch.nn.functional.gelu(x, approximate="tanh")
def _silu(x):
    return torch.nn.functional.silu(x)
def _sigmoid(x):
    return torch.sigmoid(x)
def _layernorm(x, axis=-1, eps=1e-5):
    m = x.mean(dim=axis, keepdim=True)
    v = x.var(dim=axis, keepdim=True, unbiased=False)
    return (x - m) / torch.sqrt(v + eps)
def _scatter_add(tgt, idx, src, axis=0):
    return tgt.clone().index_add_(axis, idx, src)
def _segment_sum(src, seg, n):
    out = torch.zeros((n,) + src.shape[1:], dtype=src.dtype)
    return out.index_add_(0, seg, src)
def _pad(x, pw):
    flat = tuple(v for pair in reversed(pw) for v in pair)
    return torch.nn.functional.pad(x, flat)

kernel_name = 'parallel_sum__spectral_gfnet__mixer_token_mlp__prompt'

def setup_inputs():

    _w = (lambda a: (lambda t: t.to(torch.bfloat16) if t.is_floating_point() else t)(torch.as_tensor(a)))
    def _A_setup():
        B, S, D = 1, 2048, 1024
        Df = D // 2 + 1
        return {
            "x": _w((lambda *s: torch.randn(*s, dtype=torch.bfloat16) * 0.05)(B, S, D)),
            "w_r": _w((lambda *s: torch.randn(*s, dtype=torch.bfloat16) * 1.6)(S, Df) * 0.02),
            "w_i": _w((lambda *s: torch.randn(*s, dtype=torch.bfloat16) * 1.6)(S, Df) * 0.02),
        }
    _A_in = _A_setup()

    def _B_setup():
        B, S, D, F = 1, 2048, 1024, 3584
        return {
            "x": _w((lambda *s: torch.randn(*s, dtype=torch.bfloat16) * 0.05)(B, S, D)),
            "w1": _w((lambda *s: torch.randn(*s, dtype=torch.bfloat16) * 0.4)(S, F) * (S ** -0.5)),
            "b1": _w((lambda *s: torch.randn(*s, dtype=torch.bfloat16) * 3.2)(F) * 0.02),
            "w2": _w((lambda *s: torch.randn(*s, dtype=torch.bfloat16) * 0.8)(F, S) * (F ** -0.5)),
            "b2": _w((lambda *s: torch.randn(*s, dtype=torch.bfloat16) * 3.2)(S) * 0.02),
        }
    _B_in = _B_setup()

    return {
        "A_x": _A_in["x"],
        "A_w_r": _A_in["w_r"],
        "A_w_i": _A_in["w_i"],
        "B_x": _B_in["x"],
        "B_w1": _B_in["w1"],
        "B_b1": _B_in["b1"],
        "B_w2": _B_in["w2"],
        "B_b2": _B_in["b2"],
    }

def reference(A_x, A_w_r, A_w_i, B_x, B_w1, B_b1, B_w2, B_b2):
    def _A_ref(x, w_r, w_i):
        B, S, D = x.shape
        X = (lambda x, axes=(-2,-1): torch.fft.rfft2(x.float(), dim=axes))(x, axes=(-2, -1))
        W = w_r + 1j * w_i
        X = X * W
        y = (lambda x, s, axes=(-2,-1): torch.fft.irfft2(x, s=s, dim=axes).to(torch.bfloat16))(X, (S, D), axes=(-2, -1))
        return y

    def _B_ref(x, w1, b1, w2, b2):
        B, S, D = x.shape
        h = _layernorm(x, axis=-1)
        u = torch.einsum("bsd,sf->bdf", h, w1) + b1
        u = _gelu(u)
        y = torch.einsum("bdf,fs->bds", u, w2) + b2
        return (lambda x, *d: x.permute(*d))(y, 0, 2, 1)

    x = A_x
    xn = _layernorm(x, axis=-1)
    return x + _A_ref(xn, A_w_r, A_w_i) + _B_ref(xn, B_w1, B_b1, B_w2, B_b2)
```

```python
class Asm:
    def __init__(self):
        self.lines = []
        self._uid = 0
    def __call__(self, s, *a):
        for ln in s.split('\n'):
            ln = ln.strip()
            if ln:
                self.lines.append('    ' + ln)
    def label(self, l):
        self.lines.append(l + ':')
    def raw(self, s):
        self.lines.append(s)
    def comment(self, s):
        self.lines.append('    ; ' + s)
    def uid(self, p='L'):
        self._uid += 1
        return '%s_%d' % (p, self._uid)
    def text(self):
        return '\n'.join(self.lines) + '\n'

def kernel_begin(a, name):
    a.raw('.text')
    a.raw('.globl %s' % name)
    a.raw('.p2align 8')
    a.raw('.type %s,@function' % name)
    a.label(name)

def kernel_desc(a, name, vgpr, sgpr=96, accum=None, wgy=False):
    if accum is None:
        accum = (vgpr + 3) // 4 * 4
    a.raw('.section .rodata,"a"')
    a.raw('.p2align 6')
    a.raw('.amdhsa_kernel %s' % name)
    a.raw('  .amdhsa_next_free_vgpr %d' % vgpr)
    a.raw('  .amdhsa_next_free_sgpr %d' % sgpr)
    a.raw('  .amdhsa_accum_offset %d' % accum)
    a.raw('  .amdhsa_group_segment_fixed_size 0')
    a.raw('  .amdhsa_kernarg_size 88')
    a.raw('  .amdhsa_user_sgpr_count 2')
    a.raw('  .amdhsa_user_sgpr_kernarg_segment_ptr 1')
    a.raw('  .amdhsa_system_sgpr_workgroup_id_x 1')
    if wgy:
        a.raw('  .amdhsa_system_sgpr_workgroup_id_y 1')
    a.raw('.end_amdhsa_kernel')

def srd(a, d, lo, hi, nbytes):
    a('s_mov_b32 s%d, s%d' % (d, lo))
    a('s_and_b32 s%d, s%d, 0xffff' % (d + 1, hi))
    a('s_mov_b32 s%d, 0x%x' % (d + 2, nbytes))
    a('s_mov_b32 s%d, 0x20000' % (d + 3))
```

```python
from gen_common import *
from gen_col import cap, interleave
MF = 'v_mfma_f32_32x32x16_bf16'

def c2r_body(a, sR, sWS, sX, ldsbase_s, V, sc1=''):
    vL, vC, vH, vCF, vHF, vY, vLin, vW, vRd = range(V, V + 9)
    TT = V + 10 if V % 2 == 0 else V + 9
    TT += TT & 1
    Y = TT + 16
    X = Y + 16
    Fr = X + 16; Fi = Fr + 16; Fs = Fi + 8
    TWC = Fs + 16; TWS = TWC + 16
    U = TWS + 16
    P = U + 64
    last = P + 16
    a('v_and_b32 v%d, 63, v0' % vL)
    a('v_and_b32 v%d, 31, v%d' % (vC, vL))
    a('v_lshrrev_b32 v%d, 5, v%d' % (vH, vL))
    a('v_lshlrev_b32 v%d, 5, v%d' % (vY, vC))
    a('v_lshl_add_u32 v%d, v%d, 10, v%d' % (vY, vH, vY))
    a('v_lshlrev_b32 v%d, 4, v%d' % (vLin, vL))
    a('s_lshl_b32 s36, s%d, 12' % sR)
    a('s_add_u32 s37, s36, 0x%x' % YG)
    for p in range(2):
        for q in range(2):
            a('buffer_load_dwordx4 %s, v%d, %s, s37 offen offset:%d' % (vr(Y + 8 * p + 4 * q, 4), vY, sr(sWS, 4), q * 2048 + p * 16))
    a('s_lshl_b32 s38, s%d, 3' % sR)
    a('s_add_u32 s38, s38, 0x%x' % YN)
    a('v_mov_b32 v%d, 0' % TT)
    a('buffer_load_dwordx2 %s, v%d, %s, s38 offen' % (vr(P, 2), TT, sr(sWS, 4)))
    for i in range(4):
        a('buffer_load_dwordx4 %s, v%d, %s, s36 offen offset:%d' % (vr(X + 4 * i, 4), vLin, sr(sX, 4), i * 1024))
    a('v_cvt_f32_u32 v%d, v%d' % (vCF, vC))
    a('v_cvt_f32_u32 v%d, v%d' % (vHF, vH))
    gen_F(a, Fr, Fi, vCF, vHF, TT, want_fi=2, Fs=Fs, scale=2.0 ** -20)
    gen_twiddle(a, TWC, TWS, vCF, vHF, TT)
    a('v_lshrrev_b32 v%d, 1, v%d' % (TT, vC))
    a('v_and_b32 v%d, 3, v%d' % (TT, TT))
    a('v_lshlrev_b32 v%d, 4, v%d' % (TT, TT))
    a('v_lshl_add_u32 v%d, v%d, 6, v%d' % (TT, vC, TT))
    a('v_lshl_add_u32 v%d, v%d, 3, v%d' % (TT, vH, TT))
    a('v_add_u32 v%d, s%d, v%d' % (vW, ldsbase_s, TT))
    a('v_lshrrev_b32 v%d, 3, v%d' % (TT, vL))
    a('v_xor_b32 v%d, v%d, v%d' % (TT, TT, vL))
    a('v_and_b32 v%d, 3, v%d' % (TT, TT))
    a('v_lshlrev_b32 v%d, 4, v%d' % (TT, TT))
    a('v_lshrrev_b32 v%d, 2, v%d' % (TT + 1, vL))
    a('v_lshl_add_u32 v%d, v%d, 6, v%d' % (TT, TT + 1, TT))
    a('v_add_u32 v%d, s%d, v%d' % (vRd, ldsbase_s, TT))
    a('v_lshlrev_b32 v%d, 31, v%d' % (TT, vC))
    a('v_or_b32 v%d, 1.0, v%d' % (TT, TT))
    a('v_cmp_eq_u32 vcc, 0, v%d' % vH)
    a('v_cndmask_b32 v%d, 0, v%d, vcc' % (TT, TT))
    for p in range(2):
        for i in range(1, 16):
            a('v_mov_b32 v%d, 0' % (U + 32 * p + i))
    a('s_waitcnt vmcnt(4)')
    for p in range(2):
        a('v_mul_f32 v%d, v%d, v%d' % (U + 32 * p, TT, P + p))
    def st1(p):
        o = []
        for q in range(2):
            o.append('%s %s, %s, %s, %s' % (MF, vr(U + 32 * p, 16), vr(Y + 8 * p + 4 * q, 4), vr(Fr + 4 * q, 4), vr(U + 32 * p, 16)))
            o.append('%s %s, %s, %s, %s' % (MF, vr(U + 32 * p + 16, 16), vr(Y + 8 * p + 4 * q, 4), vr(Fi + 4 * q, 4), '0' if q == 0 else vr(U + 32 * p + 16, 16)))
        return o
    def st2(p, Pp):
        return ['%s %s, %s, %s, %s' % (MF, vr(U + 32 * p, 16), vr(Pp + 4 * g, 4), vr(Fs + 4 * g, 4), '0' if g == 0 else vr(U + 32 * p, 16)) for g in range(4)]
    for m in st1(0) + st1(1): a(m)
    twiddle_pack(a, U, U + 16, TWC, TWS, P, TT)
    interleave(a, st2(0, P), cap(lambda t: twiddle_pack(t, U + 32, U + 48, TWC, TWS, Y, TT)))
    def outw(p):
        def f(t):
            for g in range(4):
                t('v_cvt_pk_bf16_f32 v%d, v%d, v%d' % (TT + 2 * g, U + 32 * p + 4 * g, U + 32 * p + 4 * g + 1))
                t('v_cvt_pk_bf16_f32 v%d, v%d, v%d' % (TT + 2 * g + 1, U + 32 * p + 4 * g + 2, U + 32 * p + 4 * g + 3))
                t('v_xor_b32 v%d, %d, v%d' % (TT + 8 + g, 16 * g, vW))
                t('ds_write_b64 v%d, %s offset:%d' % (TT + 8 + g, vr(TT + 2 * g, 2), 2048 * p))
        return f
    interleave(a, st2(1, Y), cap(outw(0)))
    outw(1)(a)
    for i in range(4):
        a('ds_read_b128 %s, v%d offset:%d' % (vr(P + 4 * i, 4), vRd, 1024 * i))
    a('s_add_u32 s37, s36, 0x%x' % BASE)
    a('s_waitcnt vmcnt(0)')
    for i in range(4):
        A = U + 16 * i; B = A + 8
        unpack(a, A, X + 4 * i, 4)
        a('s_waitcnt lgkmcnt(%d)' % (3 - i))
        unpack(a, B, P + 4 * i, 4)
        for j in range(0, 8, 2):
            a('v_pk_add_f32 %s, %s, %s' % (vr(A + j, 2), vr(A + j, 2), vr(B + j, 2)))
        for j in range(4):
            a('v_cvt_pk_bf16_f32 v%d, v%d, v%d' % (B + j, A + 2 * j, A + 2 * j + 1))
        a('buffer_store_dwordx4 %s, v%d, %s, s37 offen offset:%d %s' % (vr(B, 4), vLin, sr(sWS, 4), i * 1024, sc1))
    return last

def gen_c2r(a, name='c2r_kernel'):
    kernel_begin(a, name)
    a('s_cmp_ge_u32 s2, 256')
    a('s_cbranch_scc1 C2R_end')
    a('s_load_dwordx2 s[4:5], s[0:1], %d' % KA_X)
    a('s_load_dwordx2 s[10:11], s[0:1], %d' % KA_WS)
    a('v_lshrrev_b32 v1, 6, v0')
    a('v_readfirstlane_b32 s12, v1')
    a('s_lshl_b32 s13, s2, 2')
    a('s_add_u32 s13, s13, s12')
    a('s_lshl_b32 s14, s12, 12')
    a('s_waitcnt lgkmcnt(0)')
    srd_off(a, 24, 4, 5, 0, 4 * MB)
    srd_off(a, 28, 10, 11, 0, WS_USED)
    last = c2r_body(a, 13, 28, 24, 14, 2)
    a.label('C2R_end')
    a('s_endpgm')
    return dict(name=name, grid=256, block=256, lds=16384, vgpr=last, sgpr=100)
```

```python
from gen_common import *
MF = 'v_mfma_f32_32x32x16_bf16'
TT, IN, T1, T2, WR = 16, 32, 64, 96, 128
Fr, Fi, TWC, TWS, TC, TS = 160, 176, 192, 208, 224, 240
S2 = 50

def interleave(a, mf, va):
    n = len(mf); k = 0
    for i, m in enumerate(mf):
        a(m)
        e = (len(va) * (i + 1)) // n
        while k < e:
            a(va[k]); k += 1

def cap(f):
    t = Asm(); f(t); return [l.strip() for l in t.lines]

def s1(P, T):
    o = []
    for q in range(4):
        o.append('%s %s, %s, %s, %s' % (MF, vr(T, 16), vr(P + 4 * q, 4), vr(Fr + 4 * q, 4), '0' if q == 0 else vr(T, 16)))
        o.append('%s %s, %s, %s, %s' % (MF, vr(T + 16, 16), vr(P + 4 * q, 4), vr(Fi + 4 * q, 4), '0' if q == 0 else vr(T + 16, 16)))
    return o
def s2(P, T):
    o = []
    for q in range(4):
        o.append('%s %s, %s, %s, %s' % (MF, vr(T, 16), vr(Fr + 4 * q, 4), vr(P + 4 * q, 4), '0' if q == 0 else vr(T, 16)))
        o.append('%s %s, %s, %s, %s' % (MF, vr(T + 16, 16), vr(Fi + 4 * q, 4), vr(P + 4 * q, 4), '0' if q == 0 else vr(T + 16, 16)))
    return o

def fft_pair(a):
    for m in s1(IN, T1): a(m)
    interleave(a, s1(IN + 16, T2), cap(lambda t: twiddle_pack(t, T1, T1 + 16, TWC, TWS, IN, TT)))
    interleave(a, s2(IN, T1), cap(lambda t: twiddle_pack(t, T2, T2 + 16, TWC, TWS, IN + 16, TT)))
    for m in s2(IN + 16, T2): a(m)

def pointwise(a):
    for g in range(4):
        for p in range(2):
            n = 4 * g + 2 * p
            Er, Ei, Or, Oi = [x + n for x in (T1, T1 + 16, T2, T2 + 16)]
            tc, ts = TC + n, TS + n
            w = WR + 8 * g + 4 * p
            for r in range(2):
                a('v_lshlrev_b32 v%d, 16, v%d' % (TT + r, w + 2 * r))
                a('v_and_b32 v%d, 0xffff0000, v%d' % (TT + 2 + r, w + 2 * r))
                a('v_lshlrev_b32 v%d, 16, v%d' % (TT + 4 + r, w + 2 * r + 1))
                a('v_and_b32 v%d, 0xffff0000, v%d' % (TT + 6 + r, w + 2 * r + 1))
            W1r, W1i, W2r, W2i, Ar, Ai = [TT + 2 * x for x in range(6)]
            def f(d, x, y, z, m=0):
                for r in range(2):
                    if y == 2:
                        a('v_fma_f32 v%d, v%d, 2.0, -v%d' % (d + r, x + r, z + r))
                    elif d == z and not m:
                        a('v_fmac_f32 v%d, v%d, v%d' % (d + r, x + r, y + r))
                    else:
                        a('v_fma_f32 v%d, %sv%d, v%d, v%d' % (d + r, '-' if m else '', x + r, y + r, z + r))
            def mu(d, x, y):
                for r in range(2):
                    a('v_mul_f32 v%d, v%d, v%d' % (d + r, x + r, y + r))
            f(Ar, Or, tc, Er); f(Ai, Oi, tc, Ei)
            f(Ar, Oi, ts, Ar); f(Ai, Or, ts, Ai, 1)
            f(Er, Er, 2, Ar); f(Ei, Ei, 2, Ai)
            mu(Or, W1r, Ar); mu(Oi, W1r, Ai)
            f(Or, W1i, Ai, Or, 1); f(Oi, W1i, Ar, Oi)
            f(Ar, W2r, Er, Or); f(Ai, W2r, Ei, Oi)
            f(Ar, W2i, Ei, Ar, 1); f(Ai, W2i, Er, Ai)
            f(Or, Or, 2, Ar); f(Oi, Oi, 2, Ai)
            a('v_cvt_pk_bf16_f32 v%d, v%d, v%d' % (IN + 4 * g + p, TT + 8, TT + 9))
            a('v_cvt_pk_bf16_f32 v%d, -v%d, -v%d' % (IN + 4 * g + 2 + p, TT + 10, TT + 11))
            mu(Er, Or, tc); mu(Ei, Oi, tc)
            f(Er, Oi, ts, Er, 1); f(Ei, Or, ts, Ei)
            a('v_cvt_pk_bf16_f32 v%d, v%d, v%d' % (IN + 16 + 4 * g + p, T1 + n, T1 + n + 1))
            a('v_cvt_pk_bf16_f32 v%d, -v%d, -v%d' % (IN + 16 + 4 * g + 2 + p, T1 + 16 + n, T1 + 17 + n))

def col_body(a, sC):
    vL, vC, vH, vCF, vHF, vI, vI1, vW, vSW, vRe, vRo, vSt = range(1, 13)
    sW, sQk, sV, sB, sE, sK, sRd = 12, 13, 14, 15, 16, 17, 18
    a('s_load_dwordx2 s[10:11], s[0:1], %d' % KA_WS)
    a('v_lshrrev_b32 v%d, 6, v0' % vC)
    a('v_and_b32 v%d, 63, v0' % vL)
    a('v_readfirstlane_b32 s%d, v%d' % (sW, vC))
    a('s_lshr_b32 s%d, s%d, 3' % (sQk, sC))
    a('s_and_b32 s%d, s%d, 7' % (sV, sC))
    a('s_lshr_b32 s%d, s%d, 2' % (sB, sW))
    a('s_and_b32 s%d, s%d, 3' % (sE, sW))
    a('v_lshlrev_b32 v%d, 4, v%d' % (vW, vL))
    a('s_lshl_b32 s20, s%d, 17' % sC)
    a('s_lshl_b32 s21, s%d, 13' % sW)
    a('s_add_u32 s20, s20, s21')
    a('s_add_u32 s20, s20, 0x%x' % ZG)
    a('s_lshl_b32 s%d, s%d, 2' % (sK, sQk))
    a('s_add_u32 s%d, s%d, s%d' % (sK, sK, sE))
    a('s_lshl_b32 s%d, s%d, 5' % (sK, sK))
    a('s_lshl_b32 s22, s%d, 2' % sV)
    a('s_add_u32 s%d, s%d, s22' % (sK, sK))
    a('s_add_u32 s%d, s%d, s%d' % (sK, sK, sB))
    a('s_waitcnt lgkmcnt(0)')
    srd_off(a, 28, 10, 11, 0, WS_USED)
    def dma(rd):
        for hf in range(2):
            a('s_add_u32 m0, s21, %d' % (rd * 65536 + hf * 4096))
            a('s_add_u32 s22, s20, %d' % (rd * 65536 + hf * 4096))
            for i in range(4):
                a('buffer_load_dwordx4 v%d, s[28:31], s22 offen offset:%d lds' % (vW, i * 1024))
    def wload():
        a('s_lshl_b32 s22, s%d, 13' % sK)
        a('s_add_u32 s22, s22, 0x%x' % WT)
        a('s_add_u32 s23, s22, 4096')
        for i in range(8):
            a('buffer_load_dwordx4 %s, v%d, s[28:31], s%d offen offset:%d' % (vr(WR + 4 * i, 4), vW, 22 + (i >> 2), (i & 3) * 1024))
    dma(0)
    wload()
    dma(1)
    a('v_and_b32 v%d, 31, v%d' % (vC, vL))
    a('v_lshrrev_b32 v%d, 5, v%d' % (vH, vL))
    a('v_cvt_f32_u32 v%d, v%d' % (vCF, vC))
    a('v_cvt_f32_u32 v%d, v%d' % (vHF, vH))
    gen_F(a, Fr, Fi, vCF, vHF, TT)
    gen_twiddle(a, TWC, TWS, vCF, vHF, TT)
    a('v_mul_f32 v%d, %s, v%d' % (TT, fl(1.0 / 2048), vCF))
    a('v_fmamk_f32 v%d, v%d, %s, v%d' % (TT, vHF, fl(1.0 / 16), TT))
    for i in range(16):
        a('v_add_f32 v%d, %s, v%d' % (TS + i, fl((8 * (i >> 2) + (i & 3)) / 64.0), TT))
    for i in range(16):
        a('v_cos_f32 v%d, v%d' % (TC + i, TS + i))
    for i in range(16):
        a('v_sin_f32 v%d, v%d' % (TS + i, TS + i))
    a('s_mov_b32 s%d, 2.0' % S2)
    a('s_mov_b32 s%d, 2.0' % (S2 + 1))
    a('v_lshrrev_b32 v%d, 1, v%d' % (TT, vC))
    a('v_xor_b32 v%d, s%d, v%d' % (TT, sE, TT))
    a('v_and_b32 v%d, 7, v%d' % (TT, TT))
    a('v_lshlrev_b32 v%d, 4, v%d' % (TT, TT))
    a('v_lshl_add_u32 v%d, v%d, 7, v%d' % (TT, vC, TT))
    a('v_lshl_add_u32 v%d, v%d, 12, v%d' % (TT, vH, TT))
    a('s_lshl_b32 s22, s%d, 15' % sB)
    a('v_add_u32 v%d, s22, v%d' % (vI, TT))
    a('v_xor_b32 v%d, 64, v%d' % (vI1, vI))
    a('v_lshlrev_b32 v%d, 3, v%d' % (TT, vC))
    a('v_lshl_add_u32 v%d, v%d, 10, v%d' % (TT, vH, TT))
    a('s_lshl_b32 s22, s%d, 6' % sE)
    a('v_xor_b32 v%d, s22, v%d' % (TT, TT))
    a('s_lshl_b32 s22, s%d, 14' % sE)
    a('s_lshl_b32 s23, s%d, 2' % sB)
    a('s_add_u32 s22, s22, s23')
    a('v_add_u32 v%d, s22, v%d' % (vSW, TT))
    a('v_bfe_u32 v%d, v%d, 2, 2' % (TT, vL))
    a('v_lshrrev_b32 v%d, 4, v%d' % (TT + 1, vL))
    a('v_lshlrev_b32 v%d, 5, v%d' % (TT + 1, TT + 1))
    a('v_and_b32 v%d, 3, v%d' % (TT + 2, vL))
    a('v_lshl_add_u32 v%d, v%d, 3, v%d' % (TT + 1, TT + 2, TT + 1))
    a('v_lshlrev_b32 v%d, 6, v%d' % (TT + 3, TT))
    a('v_xor_b32 v%d, v%d, v%d' % (TT + 1, TT + 1, TT + 3))
    a('v_lshl_add_u32 v%d, v%d, 14, v%d' % (TT + 1, TT, TT + 1))
    a('s_lshl_b32 s22, s%d, 10' % sW)
    a('v_add_u32 v%d, s22, v%d' % (vRe, TT + 1))
    a('v_xor_b32 v%d, 128, v%d' % (vRo, vRe))
    a('v_lshrrev_b32 v%d, 2, v%d' % (TT, vL))
    a('v_lshlrev_b32 v%d, 12, v%d' % (TT, TT))
    a('v_lshl_add_u32 v%d, v%d, 4, v%d' % (vSt, TT + 2, TT))
    a('s_lshl_b32 s24, s%d, 19' % sW)
    a('s_lshl_b32 s22, s%d, 10' % sQk)
    a('s_add_u32 s24, s24, s22')
    a('s_lshl_b32 s22, s%d, 7' % sV)
    a('s_add_u32 s24, s24, s22')
    a('s_add_u32 s24, s24, 0x%x' % YG)
    a('s_mov_b32 s%d, 0' % sRd)
    a('s_waitcnt vmcnt(16)')
    a('s_barrier')
    a.label('COL_round')
    stamp(a, 0)
    for q in range(4):
        a('ds_read_b128 %s, v%d offset:%d' % (vr(IN + 4 * q, 4), vI, q * 8192))
    for q in range(4):
        a('ds_read_b128 %s, v%d offset:%d' % (vr(IN + 16 + 4 * q, 4), vI1, q * 8192))
    a('s_waitcnt lgkmcnt(0)')
    a('s_barrier')
    fft_pair(a)
    stamp(a, 1)
    a('s_waitcnt vmcnt(8)')
    pointwise(a)
    stamp(a, 2)
    a('s_add_u32 s%d, s%d, 2' % (sK, sK))
    a('s_cmp_lg_u32 s%d, 0' % sRd)
    a('s_cbranch_scc1 COL_nw')
    wload()
    a.label('COL_nw')
    fft_pair(a)
    a('s_cmp_lg_u32 s%d, 2' % sK)
    a('s_cbranch_scc1 COL_nhalf')
    for i in range(64):
        a('v_mul_f32 v%d, 0.5, v%d' % (T1 + i, T1 + i))
    a.label('COL_nhalf')
    stamp(a, 3)
    for rho in range(2):
        for i in range(16):
            t = TT + (i & 7)
            a('v_cvt_pk_bf16_f32 v%d, v%d, v%d' % (t, T1 + 16 * rho + i, T2 + 16 * rho + i))
            a('ds_write_b32 v%d, v%d offset:%d' % (vSW, t, rho * 8192 + (8 * (i >> 2) + (i & 3)) * 256))
    a('s_waitcnt lgkmcnt(0)')
    a('s_waitcnt vmcnt(8)')
    a('s_barrier')
    stamp(a, 4)
    for it in range(8):
        for rho in range(2):
            a('ds_read_b64_tr_b16 %s, v%d offset:%d' % (vr(T1 + 4 * it + 2 * rho, 2), vRo if it & 1 else vRe, 256 * (it >> 1) + rho * 8192))
    for it in range(8):
        a('s_waitcnt lgkmcnt(%d)' % (14 - 2 * it))
        a('s_add_u32 s22, s24, %d' % (it * 65536))
        a('buffer_store_dwordx4 %s, v%d, s[28:31], s22 offen' % (vr(T1 + 4 * it, 4), vSt))
    stamp(a, 5)
    a('s_cmp_lg_u32 s%d, 0' % sRd)
    a('s_cbranch_scc1 COL_done')
    a('s_mov_b32 s%d, 1' % sRd)
    a('s_add_u32 s24, s24, 64')
    for v in (vI, vI1, vSW, vRe, vRo):
        a('v_add_u32 v%d, 0x10000, v%d' % (v, v))
    a('s_branch COL_round')
    a.label('COL_done')
    a('s_or_b32 s22, s%d, s%d' % (sC, sW))
    a('s_cmp_lg_u32 s22, 0')
    a('s_cbranch_scc1 COL_end')
    a('s_mov_b32 s%d, 512' % sK)
    a('v_lshlrev_b32 v%d, 5, v%d' % (vI, vL))
    a('s_mov_b32 s25, 0x%x' % ZN)
    a('s_add_u32 s26, s25, 4096')
    for p in range(2):
        for q in range(4):
            a('buffer_load_dwordx4 %s, v%d, s[28:31], s%d offen offset:%d' % (vr(IN + 16 * p + 4 * q, 4), vI, 25 + (q >> 1), (q & 1) * 2048 + p * 16))
    wload()
    a('s_waitcnt vmcnt(8)')
    fft_pair(a)
    a('s_waitcnt vmcnt(0)')
    pointwise(a)
    fft_pair(a)
    a('v_lshlrev_b32 v%d, 3, v%d' % (vI, vC))
    a('v_lshl_add_u32 v%d, v%d, 10, v%d' % (vI, vH, vI))
    a('s_mov_b32 s25, 0x%x' % YN)
    a('s_add_u32 s26, s25, 4096')
    for i in range(16):
        t = IN + 2 * i
        a('v_mul_f32 v%d, 0.5, v%d' % (t, T1 + i))
        a('v_mul_f32 v%d, 0.5, v%d' % (t + 1, T2 + i))
        a('buffer_store_dwordx2 %s, v%d, s[28:31], s%d offen offset:%d' % (vr(t, 2), vI, 25 + (i >> 3), (8 * ((i >> 2) & 1) + (i & 3)) * 256))
    a.label('COL_end')
    if DIAG[0]:
        a('s_waitcnt vmcnt(0)')
        stamp_out(a, 2, sW, 28, 6, v=1)
    a('s_endpgm')

def gen_col(a, name='col_kernel'):
    kernel_begin(a, name)
    a('s_cmp_lt_u32 s2, 32')
    a('s_cbranch_scc1 COL_go')
    a('s_endpgm')
    a.label('COL_go')
    col_body(a, 2)
    return dict(name=name, grid=32, block=512, lds=131072, vgpr=256, sgpr=100)
```

```python
import struct
from asmlib import *
MB = 1 << 20
HG = 0
ZG = 4 * MB
ZN = 8 * MB
WT = 9 * MB
GG = 16 * MB
YG = 24 * MB
YN = 28 * MB
BASE = 32 * MB
PART = 40 * MB
FLAGS = 48 * MB
STAMP = 49 * MB
WS_USED = 50 * MB
DIAG = [False]
KA_X, KA_WR, KA_WI, KA_BX, KA_W1, KA_B1, KA_W2, KA_B2, KA_OUT, KA_DBG, KA_WS = [8 * i for i in range(11)]

def f2u(x):
    return struct.unpack('<I', struct.pack('<f', x))[0]
def fl(x):
    return '0x%08x' % f2u(x)
def vr(b, n):
    return 'v[%d:%d]' % (b, b + n - 1) if n > 1 else 'v%d' % b
def sr(b, n):
    return 's[%d:%d]' % (b, b + n - 1) if n > 1 else 's%d' % b

def srd_off(a, d, lo, hi, off, nbytes):
    if off:
        a('s_add_u32 s%d, s%d, 0x%x' % (d, lo, off))
        a('s_addc_u32 s%d, s%d, 0' % (d + 1, hi))
        a('s_and_b32 s%d, s%d, 0xffff' % (d + 1, d + 1))
    else:
        a('s_mov_b32 s%d, s%d' % (d, lo))
        a('s_and_b32 s%d, s%d, 0xffff' % (d + 1, hi))
    a('s_mov_b32 s%d, 0x%x' % (d + 2, nbytes))
    a('s_mov_b32 s%d, 0x20000' % (d + 3))

def allreduce(a, regs, tmps):
    for pat in ('quad_perm:[1,0,3,2]', 'quad_perm:[2,3,0,1]', 'row_half_mirror', 'row_mirror'):
        for r in regs:
            a('v_add_f32_dpp v%d, v%d, v%d %s row_mask:0xf bank_mask:0xf' % (r, r, r, pat))
    for sw in ('v_permlane16_swap_b32', 'v_permlane32_swap_b32'):
        for r, t in zip(regs, tmps):
            a('v_mov_b32 v%d, v%d' % (t, r))
        for r, t in zip(regs, tmps):
            a('%s v%d, v%d' % (sw, t, r))
        for r, t in zip(regs, tmps):
            a('v_add_f32 v%d, v%d, v%d' % (r, r, t))

def rnd_bf16(a, d, s):
    a('v_cvt_pk_bf16_f32 v%d, v%d, v%d' % (d, s, s))
    a('v_and_b32 v%d, 0xffff0000, v%d' % (d, d))

def unpack(a, dst, src, n):
    for i in range(n):
        a('v_lshlrev_b32 v%d, 16, v%d' % (dst + 2 * i, src + i))
        a('v_and_b32 v%d, 0xffff0000, v%d' % (dst + 2 * i + 1, src + i))

def gen_twiddle(a, twc, tws, vcf, vh, t0):
    a('v_mul_f32 v%d, %s, v%d' % (t0, fl(1.0 / 1024), vcf))
    a('v_mul_f32 v%d, 4.0, v%d' % (t0 + 1, vh))
    a('v_mul_f32 v%d, v%d, v%d' % (t0 + 1, t0 + 1, t0))
    for i in range(16):
        n = 8 * (i >> 2) + (i & 3)
        a('v_fmamk_f32 v%d, v%d, %s, v%d' % (tws + i, t0, fl(float(n)), t0 + 1))
    for i in range(16):
        a('v_cos_f32 v%d, v%d' % (twc + i, tws + i))
    for i in range(16):
        a('v_sin_f32 v%d, v%d' % (tws + i, tws + i))

def gen_F(a, Fr, Fi, vcf, vh, t0, nq=4, want_fi=4, Fs=None, scale=1.0):
    a('v_mul_f32 v%d, %s, v%d' % (t0, fl(1.0 / 32), vcf))
    a('v_mul_f32 v%d, 4.0, v%d' % (t0 + 1, vh))
    a('v_mul_f32 v%d, v%d, v%d' % (t0 + 1, t0 + 1, t0))
    c = t0 + 2; s = t0 + 6
    for q in range(nq):
        for e in range(4):
            a('v_fmamk_f32 v%d, v%d, %s, v%d' % (s + e, t0, fl(float(8 * q + e)), t0 + 1))
        for e in range(4):
            a('v_cos_f32 v%d, v%d' % (c + e, s + e))
        for e in range(4):
            a('v_sin_f32 v%d, v%d' % (s + e, s + e))
        a('v_cvt_pk_bf16_f32 v%d, v%d, v%d' % (Fr + 4 * q, c, c + 1))
        a('v_cvt_pk_bf16_f32 v%d, v%d, v%d' % (Fr + 4 * q + 1, c + 2, c + 3))
        a('v_cvt_pk_bf16_f32 v%d, v%d, v%d' % (Fr + 4 * q + 2, s, s + 1))
        a('v_cvt_pk_bf16_f32 v%d, v%d, v%d' % (Fr + 4 * q + 3, s + 2, s + 3))
        if Fs is not None:
            for e in range(8):
                a('v_mul_f32 v%d, %s, v%d' % (c + e, fl(scale), c + e))
            for e in range(4):
                a('v_cvt_pk_bf16_f32 v%d, v%d, v%d' % (Fs + 4 * q + e, c + 2 * e, c + 2 * e + 1))
        if q < want_fi:
            a('v_xor_b32 v%d, 0x80008000, v%d' % (Fi + 4 * q, Fr + 4 * q + 2))
            a('v_xor_b32 v%d, 0x80008000, v%d' % (Fi + 4 * q + 1, Fr + 4 * q + 3))
            a('v_mov_b32 v%d, v%d' % (Fi + 4 * q + 2, Fr + 4 * q))
            a('v_mov_b32 v%d, v%d' % (Fi + 4 * q + 3, Fr + 4 * q + 1))

def twiddle_pack(a, Tr, Ti, twc, tws, out, t0, groups=range(4), pk=False):
    for g in groups:
        b = 4 * g
        if pk:
            for p in (0, 2):
                a('v_pk_mul_f32 %s, %s, %s' % (vr(t0 + p, 2), vr(Tr + b + p, 2), vr(twc + b + p, 2)))
                a('v_pk_mul_f32 %s, %s, %s' % (vr(t0 + 4 + p, 2), vr(Ti + b + p, 2), vr(twc + b + p, 2)))
            for p in (0, 2):
                a('v_pk_fma_f32 %s, %s, %s, %s' % (vr(t0 + p, 2), vr(Ti + b + p, 2), vr(tws + b + p, 2), vr(t0 + p, 2)))
                a('v_pk_fma_f32 %s, %s, %s, %s neg_lo:[1,0,0] neg_hi:[1,0,0]' % (vr(t0 + 4 + p, 2), vr(Tr + b + p, 2), vr(tws + b + p, 2), vr(t0 + 4 + p, 2)))
        else:
            for p in range(4):
                a('v_mul_f32 v%d, v%d, v%d' % (t0 + p, Tr + b + p, twc + b + p))
            for p in range(4):
                a('v_mul_f32 v%d, v%d, v%d' % (t0 + 4 + p, Ti + b + p, twc + b + p))
            for p in range(4):
                a('v_fmac_f32 v%d, v%d, v%d' % (t0 + p, Ti + b + p, tws + b + p))
            for p in range(4):
                a('v_fma_f32 v%d, -v%d, v%d, v%d' % (t0 + 4 + p, Tr + b + p, tws + b + p, t0 + 4 + p))
        for p in range(4):
            a('v_cvt_pk_bf16_f32 v%d, v%d, v%d' % (out + b + p, t0 + 2 * p, t0 + 2 * p + 1))

def stamp(a, i, rb=56):
    if DIAG[0]:
        a('s_memrealtime s[%d:%d]' % (rb + 2 * i, rb + 1 + 2 * i))
        a('s_memtime s[%d:%d]' % (80 + 2 * i, 81 + 2 * i))
def stamp_out(a, kern, sW, srd, n, v=250, rb=56):
    if not DIAG[0]: return
    a('s_waitcnt lgkmcnt(0)')
    a('s_mov_b64 exec, 1')
    a('s_lshl_b32 s96, s2, 3')
    a('s_add_u32 s96, s96, s%d' % sW)
    a('s_lshl_b32 s96, s96, 6')
    a('s_add_u32 s96, s96, 0x%x' % (STAMP + kern * 256 * 8 * 64))
    a('v_mov_b32 v%d, 0' % v)
    for i in range(n):
        a('v_mov_b32 v%d, s%d' % (v + 1, 80 + 2 * i))
        a('v_mov_b32 v%d, s%d' % (v + 2, rb + 2 * i))
        a('buffer_store_dword v%d, v%d, %s, s96 offen offset:%d' % (v + 1, v, sr(srd, 4), 4 * i))
        a('buffer_store_dword v%d, v%d, %s, s96 offen offset:%d' % (v + 2, v, sr(srd, 4), 32 + 4 * i))
```

```python
from gen_common import *
import math
STAGE = 32768

def order(T, P, D, phi, fc=0):
    keys = []
    for s in range(T):
        lead = (s % P) == phi and s >= fc
        keys.append((max(s - D, fc - .5) if lead else s, 0 if lead else 1, s))
    keys.sort()
    return [k[2] for k in keys]

def gemm_loader(a, pfx, mode, T, NBUF, P, D, sW, sPhi, sAbase, sBbase, srdA, srdB, prio=0, shape=32, first_common=0):
    pitch = 7168 if mode == 'g1' else 4096
    vL, vT, vU, vA, vB = 1, 2, 3, 10, 14
    if prio: a('s_setprio %d' % prio)
    a('v_and_b32 v%d, 63, v0' % vL)
    a('s_and_b32 s40, s%d, 3' % sW)
    a('v_lshrrev_b32 v%d, 4, v%d' % (vT, vL))
    a('v_lshlrev_b32 v%d, 2, v%d' % (vU, vT))
    a('v_xor_b32 v%d, v%d, v%d' % (vU, vU, vL))
    a('v_and_b32 v%d, 15, v%d' % (vU, vU))
    a('v_lshlrev_b32 v%d, 4, v%d' % (vU, vU))
    if mode == 'g1':
        a('v_and_b32 v%d, 1, v%d' % (vA, vT))
        a('v_lshrrev_b32 v%d, 1, v%d' % (vT, vT))
        a('v_lshl_add_u32 v%d, v%d, 6, v%d' % (vT, vT, vA))
        a('s_mul_i32 s41, s40, %d' % (4 * pitch))
        rowi = [0, 128, 2, 130]
    else:
        a('s_mul_i32 s41, s40, %d' % (16 * pitch))
        rowi = [0, 4, 8, 12]
    a('s_add_u32 s41, s41, s%d' % sAbase)
    a('v_mul_u32_u24 v%d, %d, v%d' % (vT, pitch, vT))
    a('v_add3_u32 v%d, v%d, v%d, s41' % (vA, vT, vU))
    if shape == 16:
        a('v_xor_b32 v%d, 32, v%d' % (vU, vU))
        a('v_add3_u32 v%d, v%d, v%d, s41' % (vU, vT, vU))
    for i in range(1, 4):
        a('v_add_u32 v%d, 0x%x, v%d' % (vA + i, rowi[i] * pitch - i * 1024, vU if (shape == 16 and i >= 2) else vA))
    a('s_lshl_b32 s42, s40, 12')
    a('s_add_u32 s41, s42, s%d' % sBbase)
    a('v_lshlrev_b32 v%d, 4, v%d' % (vB, vL))
    a('v_add_u32 v%d, s41, v%d' % (vB, vB))
    nreg = (T + 3) // 4
    TA, TB = 64, 72
    for phi in range(P):
        o = order(T, P, D, phi, first_common)
        if P > 1:
            a('s_cmp_lg_u32 s%d, %d' % (sPhi, phi))
            a('s_cbranch_scc1 %s_phi%d' % (pfx, phi))
        for r in range(nreg):
            v = 0; u = 0
            for b in range(4):
                if r * 4 + b < T:
                    t = o[r * 4 + b]
                    v |= t << (8 * b)
                    u |= (16 * (t >> 2) + (t & 3)) << (8 * b)
            a('s_mov_b32 s%d, 0x%x' % (TB + r, v))
            if mode == 'g1': a('s_mov_b32 s%d, 0x%x' % (TA + r, u))
        if P > 1: a.label('%s_phi%d' % (pfx, phi))
    def issue(t):
        sel = (8 << 16) | (8 * (t % 4))
        a('s_bfe_u32 s44, s%d, 0x%x' % (TB + t // 4, sel))
        if mode == 'g1':
            a('s_bfe_u32 s43, s%d, 0x%x' % (TA + t // 4, sel))
            a('s_mul_i32 s43, s43, %d' % (16 * pitch))
        else:
            a('s_lshl_b32 s43, s44, 18')
        a('s_lshl_b32 s44, s44, 14')
        buf = (t % NBUF) * STAGE
        a('s_add_u32 m0, s42, %d' % buf)
        for i in range(4):
            a('buffer_load_dwordx4 v%d, %s, s43 offen offset:%d lds' % (vA + i, sr(srdA, 4), i * 1024))
        a('s_add_u32 m0, s42, %d' % (buf + 16384))
        for i in range(4):
            a('buffer_load_dwordx4 v%d, %s, s44 offen offset:%d lds' % (vB, sr(srdB, 4), i * 1024))
    for t in range(NBUF):
        issue(t)
    for t in range(-1, T - 1):
        inflight = max(0, min(T - 1, t + NBUF - 1) - (t + 1))
        if t == -1: inflight = NBUF - 1
        a('s_waitcnt vmcnt(%d)' % (8 * inflight))
        a('s_barrier')
        if (t + 1) % 4 == 0: stamp(a, (t + 1) // 4, 46)
        if t >= 0 and t + NBUF < T:
            issue(t + NBUF)
    stamp_out(a, 1 if mode == 'g1' else 3, sW, srdB, (T + 3) // 4, rb=46)

def gemm_main(a, pfx, mode, T, NBUF, sW, ACC, FR, vAd, init=None):
    vA0, vA1, vB, bA0, bA1, bB, vL, t0, t1 = range(vAd, vAd + 9)
    a('v_and_b32 v%d, 63, v0' % vL)
    a('s_and_b32 s40, s%d, 1' % sW)
    a('s_lshr_b32 s41, s%d, 1' % sW)
    a('v_bfe_u32 v%d, v%d, 2, 2' % (t0, vL))
    a('v_lshrrev_b32 v%d, 5, v%d' % (t1, vL))
    a('v_lshl_add_u32 v%d, v%d, 3, v%d' % (bA0, t1, t0))
    a('v_lshlrev_b32 v%d, 8, v%d' % (bA0, bA0))
    a('v_lshlrev_b32 v%d, 11, v%d' % (bB, t1))
    a('s_lshl_b32 s42, s40, 1')
    a('v_xor_b32 v%d, s42, v%d' % (t0, t0))
    a('v_lshl_add_u32 v%d, v%d, 6, v%d' % (bA0, t0, bA0))
    a('v_bfe_u32 v%d, v%d, 4, 1' % (t0, vL))
    a('v_lshl_add_u32 v%d, v%d, 5, v%d' % (bA0, t0, bA0))
    a('v_and_b32 v%d, 3, v%d' % (t0, vL))
    a('v_lshl_add_u32 v%d, v%d, 3, v%d' % (bA0, t0, bA0))
    a('v_xor_b32 v%d, 64, v%d' % (bA1, bA0))
    a('v_and_b32 v%d, 31, v%d' % (t0, vL))
    a('v_lshl_add_u32 v%d, v%d, 4, v%d' % (bB, t0, bB))
    a('s_lshl_b32 s42, s41, 10')
    a('s_add_u32 s42, s42, 16384')
    a('v_add_u32 v%d, s42, v%d' % (bB, bB))
    a('v_mov_b32 v%d, v%d' % (vA0, bA0))
    a('v_mov_b32 v%d, v%d' % (vA1, bA1))
    a('v_mov_b32 v%d, v%d' % (vB, bB))
    if init: init()
    def rd(s, ks):
        f = FR + 16 * s
        return ['ds_read_b128 %s, v%d offset:%d' % (vr(f + 8, 4), vB, ks * 4096),
                'ds_read_b64_tr_b16 %s, v%d offset:%d' % (vr(f, 2), vA0, ks * 4096),
                'ds_read_b64_tr_b16 %s, v%d offset:%d' % (vr(f + 2, 2), vA0, ks * 4096 + 1024),
                'ds_read_b64_tr_b16 %s, v%d offset:%d' % (vr(f + 4, 2), vA1, ks * 4096),
                'ds_read_b64_tr_b16 %s, v%d offset:%d' % (vr(f + 6, 2), vA1, ks * 4096 + 1024),
                'ds_read_b128 %s, v%d offset:%d' % (vr(f + 12, 4), vB, ks * 4096 + 512)]
    def mf(s, i, j):
        f = FR + 16 * s
        A = vr(f + 4 * i, 4); B = vr(f + 8 + 4 * j, 4)
        c = vr(ACC + 32 * i + 16 * j, 16)
        if mode == 'g2': A, B = B, A
        a('v_mfma_f32_32x32x16_bf16 %s, %s, %s, %s' % (c, A, B, c))
    def group(s, r):
        a('s_waitcnt lgkmcnt(3)'); mf(s, 0, 0); a(r[0]); a(r[1])
        a('s_waitcnt lgkmcnt(3)'); mf(s, 1, 0); a(r[2]); a(r[3])
        a('s_waitcnt lgkmcnt(4)'); mf(s, 0, 1); a(r[4]); a(r[5])
        mf(s, 1, 1)
    a('s_mov_b32 s43, 0')
    a('s_mov_b32 s44, %d' % (T - 1))
    stamp(a, 1)
    a('s_barrier')
    stamp(a, 2)
    for x in rd(0, 0): a(x)
    a.raw('.p2align 6')
    a.label(pfx + '_loop')
    for ks in range(3):
        group(ks & 1, rd((ks + 1) & 1, ks + 1))
    a('s_waitcnt lgkmcnt(3)'); mf(1, 0, 0)
    a('s_add_u32 s43, s43, %d' % STAGE)
    if NBUF & (NBUF - 1) == 0:
        a('s_and_b32 s43, s43, 0x%x' % (NBUF * STAGE - 1))
    else:
        a('s_cmp_eq_u32 s43, %d' % (NBUF * STAGE))
        a('s_cselect_b32 s43, 0, s43')
    a('v_add_u32 v%d, s43, v%d' % (vB, bB))
    a('v_add_u32 v%d, s43, v%d' % (vA0, bA0))
    a('v_add_u32 v%d, s43, v%d' % (vA1, bA1))
    a('s_waitcnt lgkmcnt(1)'); mf(1, 1, 0)
    a('s_sub_u32 s44, s44, 1')
    a('s_waitcnt lgkmcnt(0)')
    a('s_barrier')
    r = rd(0, 0)
    a(r[0]); a(r[1]); a(r[2])
    mf(1, 0, 1)
    a(r[3]); a(r[4]); a(r[5])
    a('s_cmp_lg_u32 s44, 0')
    mf(1, 1, 1)
    a('s_cbranch_scc1 %s_loop' % pfx)
    for ks in range(3):
        group(ks & 1, rd((ks + 1) & 1, ks + 1))
    a('s_waitcnt lgkmcnt(3)'); mf(1, 0, 0)
    a('s_waitcnt lgkmcnt(1)'); mf(1, 1, 0)
    a('s_waitcnt lgkmcnt(0)'); mf(1, 0, 1)
    mf(1, 1, 1)
    stamp(a, 3)

def gemm_main16(a, pfx, mode, T, NBUF, sW, ACC, FR, vAd, init=None):
    vA = vAd; vB = vAd + 4; bA = vAd + 5; bB = vAd + 9; vL = vAd + 10; t0 = vAd + 11; t1 = vAd + 12
    a('v_and_b32 v%d, 63, v0' % vL)
    a('s_and_b32 s40, s%d, 1' % sW)
    a('s_lshr_b32 s41, s%d, 1' % sW)
    a('v_bfe_u32 v%d, v%d, 2, 2' % (t0, vL))
    a('v_lshrrev_b32 v%d, 4, v%d' % (t1, vL))
    a('v_lshl_add_u32 v%d, v%d, 3, v%d' % (bA, t1, t0))
    a('v_lshlrev_b32 v%d, 8, v%d' % (bA, bA))
    a('v_lshlrev_b32 v%d, 11, v%d' % (bB, t1))
    a('s_lshl_b32 s42, s40, 1')
    a('v_xor_b32 v%d, s42, v%d' % (t0, t0))
    a('v_lshl_add_u32 v%d, v%d, 6, v%d' % (bA, t0, bA))
    a('v_and_b32 v%d, 1, v%d' % (t0, t1))
    a('v_lshl_add_u32 v%d, v%d, 5, v%d' % (bA, t0, bA))
    a('v_and_b32 v%d, 3, v%d' % (t0, vL))
    a('v_lshl_add_u32 v%d, v%d, 3, v%d' % (bA, t0, bA))
    for i in range(1, 4):
        a('v_xor_b32 v%d, %d, v%d' % (bA + i, 32 * i, bA))
    a('v_and_b32 v%d, 15, v%d' % (t0, vL))
    a('v_lshl_add_u32 v%d, v%d, 4, v%d' % (bB, t0, bB))
    a('s_lshl_b32 s42, s41, 10')
    a('s_add_u32 s42, s42, 16384')
    a('v_add_u32 v%d, s42, v%d' % (bB, bB))
    for i in range(5):
        a('v_mov_b32 v%d, v%d' % (vA + i, bA + i))
    if init: init()
    def rd(s, ks):
        f = FR + 32 * s
        A = lambda i, u: (('A', i), 'ds_read_b64_tr_b16 %s, v%d offset:%d' % (vr(f + 4 * i + 2 * u, 2), vA + i, ks * 8192 + u * 1024))
        B = lambda j: (('B', j), 'ds_read_b128 %s, v%d offset:%d' % (vr(f + 16 + 4 * j, 4), vB, ks * 8192 + j * 256))
        return [A(0, 0), A(0, 1), B(0), B(1), B(2), B(3), A(1, 0), A(1, 1), A(2, 0), A(2, 1), A(3, 0), A(3, 1)]
    def mf(s, i, j):
        f = FR + 32 * s
        A = vr(f + 4 * i, 4); B = vr(f + 16 + 4 * j, 4)
        c = vr(ACC + 16 * i + 4 * j, 4)
        if mode == 'g2': A, B = B, A
        a('v_mfma_f32_16x16x32_bf16 %s, %s, %s, %s' % (c, A, B, c))
    keys = [k for k, _ in rd(0, 0)]
    def group(s, r, start, hooks={}):
        done = 0; issued = 0
        for n in range(16):
            i, j = n >> 2, n & 3
            need = max(x for x, k in enumerate(keys) if k in (('A', i), ('B', j))) + 1
            if need > done:
                a('s_waitcnt lgkmcnt(%d)' % (12 - need + issued)); done = need
            mf(s, i, j)
            if n in hooks:
                if hooks[n](): done = 12
            if r is not None and n >= start and issued < 12:
                a(r[issued][1]); issued += 1
    a('s_mov_b32 s43, 0')
    a('s_mov_b32 s44, %d' % (T - 1))
    stamp(a, 1)
    a('s_barrier')
    stamp(a, 2)
    for x in rd(0, 0): a(x[1])
    a.raw('.p2align 6')
    a.label(pfx + '_loop')
    def adv():
        a('s_add_u32 s43, s43, %d' % STAGE)
        if NBUF & (NBUF - 1) == 0:
            a('s_and_b32 s43, s43, 0x%x' % (NBUF * STAGE - 1))
        else:
            a('s_cmp_eq_u32 s43, %d' % (NBUF * STAGE))
            a('s_cselect_b32 s43, 0, s43')
        a('s_sub_u32 s44, s44, 1')
    def upd(lo, hi):
        def f():
            for i in range(lo, hi):
                a('v_add_u32 v%d, s43, v%d' % (vA + i, bA + i))
        return f
    group(0, rd(1, 1), 0, {12: adv, 13: upd(0, 2), 14: upd(2, 4), 15: upd(4, 5)})
    def bar():
        a('s_waitcnt lgkmcnt(0)'); a('s_barrier'); return True
    group(1, rd(0, 0), 1, {1: bar, 14: lambda: a('s_cmp_lg_u32 s44, 0')})
    a('s_cbranch_scc1 %s_loop' % pfx)
    group(0, rd(1, 1), 0)
    group(1, None, 0)
    stamp(a, 3)

def g1_body(a, NBUF=4, P=4, D=3, prio=0, shape=32, fc=0):
    T = 32
    stamp(a, 0)
    a('s_load_dwordx4 s[4:7], s[0:1], %d' % KA_W1)
    a('s_load_dwordx2 s[10:11], s[0:1], %d' % KA_WS)
    sW, sFt, sDt, sPhi = 12, 13, 14, 15
    a('v_lshrrev_b32 v1, 6, v0')
    a('s_and_b32 s16, s2, 7')
    a('v_readfirstlane_b32 s%d, v1' % sW)
    a('s_lshr_b32 s17, s2, 3')
    a('s_lshr_b32 s18, s17, 2')
    a('s_and_b32 s19, s17, 3')
    a('s_lshr_b32 s20, s16, 1')
    a('s_mul_i32 s%d, s20, 7' % sFt)
    a('s_add_u32 s%d, s%d, s18' % (sFt, sFt))
    a('s_and_b32 s20, s16, 1')
    a('s_lshl_b32 s%d, s20, 2' % sDt)
    a('s_add_u32 s%d, s%d, s19' % (sDt, sDt))
    a('s_add_u32 s%d, s18, s19' % sPhi)
    a('s_and_b32 s%d, s%d, %d' % (sPhi, sPhi, P - 1))
    a('s_lshl_b32 s20, s%d, 8' % sFt)
    a('s_lshl_b32 s21, s%d, 19' % sDt)
    if HG: a('s_add_u32 s21, s21, 0x%x' % HG)
    a('s_waitcnt lgkmcnt(0)')
    srd_off(a, 24, 4, 5, 0, 2048 * 7168)
    srd_off(a, 28, 10, 11, 0, WS_USED)
    a('s_cmp_lt_u32 s%d, 4' % sW)
    a('s_cbranch_scc1 G1_compute')
    gemm_loader(a, 'G1', 'g1', T, NBUF, P, D, sW, sPhi, 20, 21, 24, 28, prio, shape, fc)
    a('s_endpgm')
    a.label('G1_compute')
    ACC, vAd, BT = 64, 2, 128
    FR = 32 if shape == 32 else 128
    vL = vAd + (6 if shape == 32 else 10)
    def init():
        srd_off(a, 32, 6, 7, 0, 7168)
        a('s_lshl_b32 s45, s40, 7')
        a('s_add_u32 s45, s45, s20')
        if shape == 32:
            a('v_lshrrev_b32 v20, 5, v%d' % vL)
            a('v_lshlrev_b32 v20, 3, v20')
            for i in range(2):
                for g in range(4):
                    a('buffer_load_dwordx2 %s, v20, s[32:35], s45 offen offset:%d' % (vr(BT + 8 * i + 2 * g, 2), 64 * i + 16 * g))
            a('s_waitcnt vmcnt(0)')
            for i in range(2):
                unpack(a, ACC + 32 * i, BT + 8 * i, 8)
                for r in range(16):
                    a('v_mov_b32 v%d, v%d' % (ACC + 32 * i + 16 + r, ACC + 32 * i + r))
        else:
            a('v_lshrrev_b32 v20, 4, v%d' % vL)
            a('v_lshlrev_b32 v20, 3, v20')
            for i in range(4):
                a('buffer_load_dwordx2 %s, v20, s[32:35], s45 offen offset:%d' % (vr(BT + 2 * i, 2), 32 * i))
            a('s_waitcnt vmcnt(0)')
            for i in range(4):
                unpack(a, ACC + 16 * i, BT + 2 * i, 2)
                for r in range(12):
                    a('v_mov_b32 v%d, v%d' % (ACC + 16 * i + 4 + r, ACC + 16 * i + (r & 3)))
    (gemm_main if shape == 32 else gemm_main16)(a, 'G1', 'g1', T, NBUF, sW, ACC, FR, vAd, init)
    c1 = -2.0 * math.sqrt(2.0 / math.pi) * math.log2(math.e)
    c2 = c1 * 0.044715
    vS = 20; K1 = 22; K2 = 24; ONE = 26
    a('v_mov_b32 v%d, %s' % (K1, fl(c1))); a('v_mov_b32 v%d, %s' % (K1 + 1, fl(c1)))
    a('v_mov_b32 v%d, %s' % (K2, fl(c2))); a('v_mov_b32 v%d, %s' % (K2 + 1, fl(c2)))
    a('v_mov_b32 v%d, 1.0' % ONE); a('v_mov_b32 v%d, 1.0' % (ONE + 1))
    a('v_lshrrev_b32 v%d, 5, v%d' % (vS, vL))
    a('v_lshlrev_b32 v%d, 11, v%d' % (vS, vS))
    a('v_and_b32 v%d, 31, v%d' % (vS + 1, vL))
    a('v_lshl_add_u32 v%d, v%d, 4, v%d' % (vS, vS + 1, vS))
    a('s_mul_i32 s45, s%d, %d' % (sDt, 448 * 2048))
    a('s_lshl_b32 s46, s%d, 15' % sFt)
    a('s_add_u32 s45, s45, s46')
    a('s_lshl_b32 s46, s40, 14')
    a('s_add_u32 s45, s45, s46')
    a('s_lshl_b32 s46, s41, 10')
    a('s_add_u32 s45, s45, s46')
    a('s_add_u32 s45, s45, 0x%x' % GG)
    TT = 128
    for blk in range(8):
        u = ACC + 8 * blk
        if shape == 32:
            octp, jj, swp = 4 * (blk >> 2) + 2 * (blk & 1), (blk >> 1) & 1, 'v_permlane32_swap_b32'
        else:
            octp, jj, swp = 2 * (blk >> 1), blk & 1, 'v_permlane16_swap_b32'
        t = TT + 16 * (blk & 3)
        o = t + 8
        for p in range(0, 8, 2):
            a('v_pk_mul_f32 %s, %s, %s' % (vr(t + p, 2), vr(u + p, 2), vr(u + p, 2)))
        for p in range(0, 8, 2):
            a('v_pk_fma_f32 %s, %s, %s, %s' % (vr(t + p, 2), vr(t + p, 2), vr(K2, 2), vr(K1, 2)))
        for p in range(0, 8, 2):
            a('v_pk_mul_f32 %s, %s, %s' % (vr(t + p, 2), vr(t + p, 2), vr(u + p, 2)))
        for p in range(8):
            a('v_exp_f32 v%d, v%d' % (t + p, t + p))
        for p in range(0, 8, 2):
            a('v_pk_add_f32 %s, %s, %s' % (vr(t + p, 2), vr(t + p, 2), vr(ONE, 2)))
        for p in range(8):
            a('v_rcp_f32 v%d, v%d' % (t + p, t + p))
        for p in range(0, 8, 2):
            a('v_pk_mul_f32 %s, %s, %s' % (vr(t + p, 2), vr(t + p, 2), vr(u + p, 2)))
        for p in range(4):
            a('v_cvt_pk_bf16_f32 v%d, v%d, v%d' % (o + p, t + 2 * p, t + 2 * p + 1))
        a('%s v%d, v%d' % (swp, o, o + 2))
        a('%s v%d, v%d' % (swp, o + 1, o + 3))
        a('s_add_u32 s46, s45, %d' % (octp * 2048))
        a('buffer_store_dwordx4 %s, v%d, s[28:31], s46 offen offset:%d' % (vr(o, 4), vS, jj * 512))
    stamp(a, 4)
    if DIAG[0]: a('s_waitcnt vmcnt(0)')
    stamp(a, 5)
    stamp_out(a, 1, sW, 28, 6)

def gen_g1(a, name='g1_kernel', **kw):
    NBUF = kw.get('NBUF', 4)
    kernel_begin(a, name)
    a('s_cmp_ge_u32 s2, 224')
    a('s_cbranch_scc1 G1_end')
    g1_body(a, **kw)
    a.label('G1_end')
    a('s_endpgm')
    return dict(name=name, grid=224, block=512, lds=NBUF * STAGE, vgpr=256 if DIAG[0] else 200, sgpr=100)

POLL_MAX = 400000
def poll_flag(a, lab, vT, vAddr, srd, soff, want, scnt):
    a('s_mov_b32 s%d, %d' % (scnt, POLL_MAX))
    a.label(lab)
    a('buffer_load_dword v%d, v%d, %s, s%d offen sc1' % (vT, vAddr, sr(srd, 4), soff))
    a('s_sub_u32 s%d, s%d, 1' % (scnt, scnt))
    a('s_cbranch_scc1 %s_out' % lab)
    a('s_waitcnt vmcnt(0)')
    a('v_readfirstlane_b32 s%d, v%d' % (scnt + 1, vT))
    a('s_cmp_lg_u32 s%d, %s' % (scnt + 1, want))
    a('s_cbranch_scc1 %s' % lab)
    a.label(lab + '_out')

def g2_body(a, NBUF=4, P=4, D=3, prio=0, fc=0, opt=2):
    T = 28
    stamp(a, 0)
    a('s_load_dwordx4 s[4:7], s[0:1], %d' % KA_W2)
    a('s_load_dwordx2 s[8:9], s[0:1], %d' % KA_OUT)
    a('s_load_dwordx2 s[10:11], s[0:1], %d' % KA_WS)
    sW, sSt, sDt, sPhi, sKh = 12, 13, 14, 15, 22
    a('v_lshrrev_b32 v1, 6, v0')
    a('s_and_b32 s%d, s2, 1' % sKh)
    a('v_readfirstlane_b32 s%d, v1' % sW)
    a('s_bfe_u32 s16, s2, 0x20001')
    a('s_lshr_b32 s18, s2, 5')
    a('s_bfe_u32 s19, s2, 0x20003')
    if opt == 2:
        a('s_mov_b32 s%d, s18' % sDt)
        a('s_lshl_b32 s%d, s16, 2' % sSt)
        a('s_add_u32 s%d, s%d, s19' % (sSt, sSt))
    else:
        a('s_and_b32 s17, s16, 1')
        a('s_lshl_b32 s%d, s17, 2' % sDt)
        a('s_add_u32 s%d, s%d, s19' % (sDt, sDt))
        a('s_lshr_b32 s17, s16, 1')
        a('s_lshl_b32 s%d, s17, 3' % sSt)
        a('s_add_u32 s%d, s%d, s18' % (sSt, sSt))
    a('s_add_u32 s%d, s18, s19' % sPhi)
    a('s_and_b32 s%d, s%d, %d' % (sPhi, sPhi, P - 1))
    a('s_mul_i32 s20, s%d, %d' % (sKh, 1792 * 4096))
    a('s_lshl_b32 s17, s%d, 8' % sSt)
    a('s_add_u32 s20, s20, s17')
    a('s_mul_i32 s21, s%d, %d' % (sDt, 448 * 2048))
    a('s_mul_i32 s17, s%d, %d' % (sKh, 224 * 2048))
    a('s_add_u32 s21, s21, s17')
    a('s_add_u32 s21, s21, 0x%x' % GG)
    a('s_waitcnt lgkmcnt(0)')
    srd_off(a, 24, 4, 5, 0, 3584 * 4096)
    srd_off(a, 28, 10, 11, 0, WS_USED)
    a('s_cmp_lt_u32 s%d, 4' % sW)
    a('s_cbranch_scc1 G2_compute')
    gemm_loader(a, 'G2', 'g2', T, NBUF, P, D, sW, sPhi, 20, 21, 24, 28, prio, 16, fc)
    a('s_endpgm')
    a.label('G2_compute')
    ACC, FR, vAd = 64, 128, 2
    vL = vAd + 10
    vB2, vO, vLin, vW, vRd, vZ, BS = 16, 18, 19, 20, 21, 22, 32
    def init():
        srd_off(a, 32, 6, 7, 0, 4096)
        srd_off(a, 36, 8, 9, 0, 4 * MB)
        a('s_lshl_b32 s45, s%d, 7' % sSt)
        a('s_lshl_b32 s46, s40, 6')
        a('s_add_u32 s45, s45, s46')
        a('s_lshl_b32 s46, s%d, 5' % sKh)
        a('s_add_u32 s45, s45, s46')
        a('s_lshl_b32 s46, s45, 1')
        a('v_and_b32 v%d, 15, v%d' % (vZ, vL))
        a('v_lshlrev_b32 v%d, 1, v%d' % (vO, vZ))
        a('buffer_load_ushort v%d, v%d, s[32:35], s46 offen' % (vB2, vO))
        a('buffer_load_ushort v%d, v%d, s[32:35], s46 offen offset:32' % (vB2 + 1, vO))
        a('s_lshl_b32 s47, s45, 11')
        a('s_lshl_b32 s46, s%d, 8' % sDt)
        a('s_add_u32 s47, s47, s46')
        a('s_lshl_b32 s46, s41, 7')
        a('s_add_u32 s47, s47, s46')
        a('v_lshrrev_b32 v%d, 3, v%d' % (vO, vL))
        a('v_and_b32 v%d, 7, v%d' % (vRd, vL))
        a('v_xor_b32 v%d, v%d, v%d' % (vW, vRd, vO))
        a('v_lshlrev_b32 v%d, 4, v%d' % (vRd, vRd))
        a('v_lshlrev_b32 v%d, 4, v%d' % (vW, vW))
        a('s_lshl_b32 s46, s%d, 12' % sW)
        a('s_add_u32 s46, s46, %d' % ((T % NBUF) * STAGE))
        a('v_lshl_add_u32 v%d, v%d, 7, v%d' % (vW, vO, vW))
        a('v_lshl_add_u32 v%d, v%d, 11, v%d' % (vO, vO, vRd))
        a('v_add_u32 v%d, s46, v%d' % (vRd, vW))
        a('v_lshrrev_b32 v%d, 5, v%d' % (vW, vL))
        a('v_xor_b32 v%d, v%d, v%d' % (vW, vW, vZ))
        a('v_and_b32 v%d, 7, v%d' % (vW, vW))
        a('v_lshlrev_b32 v%d, 4, v%d' % (vW, vW))
        a('v_lshl_add_u32 v%d, v%d, 7, v%d' % (vW, vZ, vW))
        a('v_bfe_u32 v%d, v%d, 4, 1' % (vZ, vL))
        a('v_lshl_add_u32 v%d, v%d, 3, v%d' % (vW, vZ, vW))
        a('v_add_u32 v%d, s46, v%d' % (vW, vW))
        a('v_lshlrev_b32 v%d, 4, v%d' % (vLin, vL))
        a('v_mov_b32 v%d, 0' % vZ)
        a('s_add_u32 s48, s47, 0x%x' % BASE)
        for it in range(4):
            a('s_add_u32 s46, s48, %d' % (it * 16384))
            a('buffer_load_dwordx4 %s, v%d, s[28:31], s46 offen' % (vr(BS + 4 * it, 4), vO))
        for r in range(64):
            a('v_mov_b32 v%d, 0' % (ACC + r))
        a('s_lshl_b32 s49, s2, 2')
        a('s_add_u32 s49, s49, s%d' % sW)
        a('s_xor_b32 s50, s49, 4')
        a('s_lshl_b32 s51, s49, 6')
        a('s_lshl_b32 s52, s50, 6')
        a('s_add_u32 s51, s51, 0x%x' % FLAGS)
        a('s_add_u32 s52, s52, 0x%x' % FLAGS)
        a('s_lshl_b32 s49, s49, 13')
        a('s_lshl_b32 s50, s50, 13')
        a('s_add_u32 s49, s49, 0x%x' % PART)
        a('s_add_u32 s50, s50, 0x%x' % PART)
        a('s_add_u32 s53, s49, 4096')
        a('s_add_u32 s54, s50, 4096')
    gemm_main16(a, 'G2', 'g2', T, NBUF, sW, ACC, FR, vAd, init)
    a('s_waitcnt vmcnt(0)')
    a('s_cmp_eq_u32 s%d, 0' % sKh)
    a('s_cbranch_scc1 G2_k0')
    R = 128
    for kh in (1, 0):
        if kh == 0: a.label('G2_k0')
        keep = ACC + 32 * kh; send = ACC + 32 * (1 - kh)
        for i in range(8):
            a('buffer_store_dwordx4 %s, v%d, s[28:31], s%d offen offset:%d sc1' % (vr(send + 4 * i, 4), vLin, 49 if i < 4 else 53, (i & 3) * 1024))
        a('v_mov_b32 v%d, 1' % (vZ + 1))
        a('v_lshlrev_b32 v%d, 16, v%d' % (vB2, vB2))
        a('v_lshlrev_b32 v%d, 16, v%d' % (vB2 + 1, vB2 + 1))
        for r in range(32):
            a('v_add_f32 v%d, v%d, v%d' % (keep + r, keep + r, vB2 + (r >> 4)))
        a('s_waitcnt vmcnt(0)')
        a('s_mov_b64 exec, 1')
        a('buffer_store_dword v%d, v%d, s[28:31], s51 offen sc1' % (vZ + 1, vZ))
        poll_flag(a, 'G2_poll%d' % kh, vZ + 2, vZ, 28, 52, '1', 16)
        a('s_mov_b64 exec, -1')
        stamp(a, 4)
        for i in range(8):
            a('buffer_load_dwordx4 %s, v%d, s[28:31], s%d offen offset:%d sc1' % (vr(R + 4 * i, 4), vLin, 50 if i < 4 else 54, (i & 3) * 1024))
        for i in range(8):
            a('s_waitcnt vmcnt(%d)' % (7 - i))
            u = keep + 4 * i
            a('v_pk_add_f32 %s, %s, %s' % (vr(u, 2), vr(u, 2), vr(R + 4 * i, 2)))
            a('v_pk_add_f32 %s, %s, %s' % (vr(u + 2, 2), vr(u + 2, 2), vr(R + 4 * i + 2, 2)))
            a('v_cvt_pk_bf16_f32 v%d, v%d, v%d' % (u, u, u + 1))
            a('v_cvt_pk_bf16_f32 v%d, v%d, v%d' % (u + 1, u + 2, u + 3))
            a('v_xor_b32 v%d, %d, v%d' % (u + 2, 32 * (i & 3), vW))
            a('ds_write_b64 v%d, %s offset:%d' % (u + 2, vr(u, 2), 2048 * (i >> 2)))
        if kh == 1: a('s_branch G2_fin')
    a.label('G2_fin')
    for it in range(4):
        a('ds_read_b128 %s, v%d offset:%d' % (vr(R + 4 * it, 4), vRd, 1024 * it))
    for it in range(4):
        A = ACC + 16 * it; B = A + 8
        unpack(a, A, BS + 4 * it, 4)
        a('s_waitcnt lgkmcnt(%d)' % (3 - it))
        unpack(a, B, R + 4 * it, 4)
        for j in range(0, 8, 2):
            a('v_pk_add_f32 %s, %s, %s' % (vr(A + j, 2), vr(A + j, 2), vr(B + j, 2)))
        for j in range(4):
            a('v_cvt_pk_bf16_f32 v%d, v%d, v%d' % (B + j, A + 2 * j, A + 2 * j + 1))
        a('s_add_u32 s46, s47, %d' % (it * 16384))
        a('buffer_store_dwordx4 %s, v%d, s[36:39], s46 offen' % (vr(B, 4), vO))
    if DIAG[0]: a('s_waitcnt vmcnt(0)')
    stamp(a, 5)
    stamp_out(a, 3, sW, 28, 6)

def gen_g2(a, name='g2_kernel', **kw):
    NBUF = kw.get('NBUF', 4)
    kernel_begin(a, name)
    a('s_cmp_ge_u32 s2, 256')
    a('s_cbranch_scc1 G2_end')
    g2_body(a, **kw)
    a.label('G2_end')
    a('s_endpgm')
    return dict(name=name, grid=256, block=512, lds=NBUF * STAGE, vgpr=256 if DIAG[0] else 200, sgpr=100)

def gen_k2(a, name='k2_kernel', **kw):
    from gen_col import col_body
    kernel_begin(a, name)
    a('s_cmp_lt_u32 s2, 224')
    a('s_cbranch_scc1 K2_g1')
    a('s_cmp_ge_u32 s2, 256')
    a('s_cbranch_scc1 G1_end')
    a('s_sub_u32 s3, s2, 224')
    col_body(a, 3)
    a.label('K2_g1')
    g1_body(a, **kw)
    a.label('G1_end')
    a('s_endpgm')
    return dict(name=name, grid=256, block=512, lds=131072, vgpr=256, sgpr=100)
```

```python
from gen_common import *
NIMG = 0
XIMG = 64
HIMG = XIMG + 16384
ZIMG = HIMG + 8 * 2112
WIMG = ZIMG + 8 * 2056
K1_LDS = WIMG + 4 * 4160

def ln_stats1(a, F, s0, s1, t0, t1, want_alt=None):
    a('v_pk_add_f32 %s, %s, %s' % (vr(s0, 2), vr(F, 2), vr(F + 2, 2)))
    a('v_pk_add_f32 %s, %s, %s' % (vr(t0, 2), vr(F + 4, 2), vr(F + 6, 2)))
    for i in (8, 12):
        a('v_pk_add_f32 %s, %s, %s' % (vr(s0, 2), vr(s0, 2), vr(F + i, 2)))
        a('v_pk_add_f32 %s, %s, %s' % (vr(t0, 2), vr(t0, 2), vr(F + i + 2, 2)))
    a('v_pk_add_f32 %s, %s, %s' % (vr(s0, 2), vr(s0, 2), vr(t0, 2)))

def layernorm(a, F, Dd, P, T, alt=None, mid=None):
    s0, s1, t0, t1, m, mb, u0, u1 = range(T, T + 8)
    ln_stats1(a, F, s0, s1, t0, t1)
    if alt is not None:
        a('v_sub_f32 v%d, v%d, v%d' % (alt, s0, s1))
    a('v_add_f32 v%d, v%d, v%d' % (m, s0, s1))
    if alt is not None:
        allreduce(a, [m, alt], [t0, t1])
    else:
        allreduce(a, [m], [t0])
    a('v_mul_f32 v%d, %s, v%d' % (m, fl(1.0 / 1024), m))
    rnd_bf16(a, u0, m)
    a('v_mov_b32 v%d, v%d' % (u1, u0))
    for i in range(0, 16, 2):
        a('v_pk_add_f32 %s, %s, %s neg_lo:[0,1] neg_hi:[0,1]' % (vr(Dd + i, 2), vr(F + i, 2), vr(u0, 2)))
    a('v_sub_f32 v%d, v%d, v%d' % (mb, m, u0))
    a('v_pk_mul_f32 %s, %s, %s' % (vr(s0, 2), vr(Dd, 2), vr(Dd, 2)))
    a('v_pk_mul_f32 %s, %s, %s' % (vr(t0, 2), vr(Dd + 2, 2), vr(Dd + 2, 2)))
    for i in range(4, 16, 4):
        a('v_pk_fma_f32 %s, %s, %s, %s' % (vr(s0, 2), vr(Dd + i, 2), vr(Dd + i, 2), vr(s0, 2)))
        a('v_pk_fma_f32 %s, %s, %s, %s' % (vr(t0, 2), vr(Dd + i + 2, 2), vr(Dd + i + 2, 2), vr(t0, 2)))
    a('v_pk_add_f32 %s, %s, %s' % (vr(s0, 2), vr(s0, 2), vr(t0, 2)))
    a('v_add_f32 v%d, v%d, v%d' % (m, s0, s1))
    for i in range(8):
        a('v_cvt_pk_bf16_f32 v%d, v%d, v%d' % (P + i, Dd + 2 * i, Dd + 2 * i + 1))
    allreduce(a, [m], [t0])
    if mid: mid()
    unpack(a, Dd, P, 8)
    a('v_mul_f32 v%d, v%d, v%d' % (mb, mb, mb))
    a('v_fmamk_f32 v%d, v%d, %s, v%d' % (m, m, fl(1.0 / 1024), mb) if False else 'v_mul_f32 v%d, %s, v%d' % (m, fl(1.0 / 1024), m))
    a('v_sub_f32 v%d, v%d, v%d' % (m, m, mb))
    a('v_max_f32 v%d, 0, v%d' % (m, m))
    rnd_bf16(a, m, m)
    a('v_add_f32 v%d, %s, v%d' % (m, fl(1e-5), m))
    rnd_bf16(a, m, m)
    a('v_sqrt_f32 v%d, v%d' % (m, m))
    rnd_bf16(a, m, m)
    a('v_rcp_f32 v%d, v%d' % (u0, m))
    a('v_mov_b32 v%d, v%d' % (u1, u0))
    for i in range(0, 16, 2):
        a('v_pk_mul_f32 %s, %s, %s' % (vr(Dd + i, 2), vr(Dd + i, 2), vr(u0, 2)))
    for i in range(8):
        a('v_cvt_pk_bf16_f32 v%d, v%d, v%d' % (P + i, Dd + 2 * i, Dd + 2 * i + 1))

def gen_k1(a, name='k1_kernel'):
    kernel_begin(a, name)
    a('s_cmp_ge_u32 s2, 256')
    a('s_cbranch_scc1 K1_end')
    stamp(a, 0)
    a('s_load_dwordx4 s[4:7], s[0:1], %d' % KA_X)
    a('s_load_dwordx2 s[8:9], s[0:1], %d' % KA_WI)
    a('s_load_dwordx2 s[10:11], s[0:1], %d' % KA_WS)
    vL, vC, vG, vR4, vCC, vCF, vHF = 1, 2, 3, 4, 5, 6, 7
    X, Wd, F, Dd, T = 8, 16, 24, 40, 56
    B1c, B1s, B2, TWC, TWS = 64, 72, 80, 96, 112
    Tr, Ti, D2, A1, A2, P, TT = 128, 144, 160, 176, 184, 200, 208
    vA, vB, vALT, vW5 = 216, 217, 218, 219
    O = 220
    sW, sOct, sQd, sM2, sRow = 12, 2, 13, 14, 15
    a('v_lshrrev_b32 v%d, 6, v0' % vA)
    a('v_and_b32 v%d, 63, v0' % vL)
    a('v_readfirstlane_b32 s%d, v%d' % (sW, vA))
    a('s_lshr_b32 s%d, s2, 5' % sQd)
    a('s_and_b32 s%d, s2, 31' % sM2)
    a('s_lshl_b32 s%d, s%d, 8' % (sRow, sQd))
    a('s_lshr_b32 s16, s%d, 1' % sW)
    a('s_lshl_b32 s16, s16, 6')
    a('s_add_u32 s%d, s%d, s16' % (sRow, sRow))
    a('s_lshl_b32 s16, s%d, 1' % sM2)
    a('s_add_u32 s%d, s%d, s16' % (sRow, sRow))
    a('s_and_b32 s16, s%d, 1' % sW)
    a('s_add_u32 s%d, s%d, s16' % (sRow, sRow))
    a('s_lshl_b32 s17, s%d, 11' % sRow)
    sJ1q, sGH, sKR = 18, 19, 20
    a('s_lshr_b32 s16, s2, 2')
    a('s_and_b32 s%d, s16, 7' % sJ1q)
    a('s_lshr_b32 s%d, s16, 3' % sGH)
    a('s_and_b32 s%d, s2, 3' % sKR)
    a('s_lshl_b32 s21, s%d, 2' % sJ1q)
    a('s_lshl_b32 s16, s%d, 7' % sGH)
    a('s_add_u32 s21, s21, s16')
    a('s_lshr_b32 s53, s%d, 1' % sGH)
    a('s_lshl_b32 s53, s53, 11')
    a('s_and_b32 s16, s%d, 1' % sGH)
    a('s_lshl_b32 s16, s16, 9')
    a('s_add_u32 s53, s53, s16')
    a('s_lshl_b32 s16, s%d, 6' % sJ1q)
    a('s_add_u32 s53, s53, s16')
    a('s_and_b32 s16, s%d, 3' % sW)
    a('s_add_u32 s22, s21, s16')
    a('s_lshr_b32 s16, s%d, 2' % sW)
    a('s_lshl_b32 s16, s16, 10')
    a('s_add_u32 s22, s22, s16')
    a('s_mul_i32 s22, s22, 1026')
    a('s_lshl_b32 s16, s%d, 8' % sKR)
    a('s_add_u32 s22, s22, s16')
    a('v_lshlrev_b32 v%d, 4, v%d' % (vA, vL))
    a('v_lshrrev_b32 v%d, 4, v%d' % (vG, vL))
    a('v_and_b32 v%d, 15, v%d' % (vB, vL))
    a('v_lshlrev_b32 v%d, 4, v%d' % (vB, vB))
    a('v_mov_b32 v%d, %d' % (vC, 32 * 1026))
    a('v_mad_u32_u24 v%d, v%d, v%d, v%d' % (vB, vG, vC, vB))
    a('s_waitcnt lgkmcnt(0)')
    srd_off(a, 24, 4, 5, 0, 4 * MB)
    srd_off(a, 28, 6, 7, 0, 2048 * 1026)
    srd_off(a, 32, 8, 9, 0, 2048 * 1026)
    srd_off(a, 36, 10, 11, 0, WS_USED)
    a('s_cmp_eq_u32 s%d, 1' % sW)
    a('s_cselect_b32 s23, s%d, 0' % sKR)
    a('s_cmp_lg_u32 s23, 3')
    a('s_cbranch_scc1 K1_now5')
    a('v_bfe_u32 v%d, v%d, 2, 2' % (vR4, vL))
    a('v_lshlrev_b32 v%d, 5, v%d' % (vR4, vR4))
    a('v_add_u32 v%d, v%d, v%d' % (vR4, vR4, vG))
    a('v_bfe_u32 v%d, v%d, 1, 1' % (vCC, vL))
    a('v_lshl_add_u32 v%d, v%d, 10, v%d' % (vR4, vCC, vR4))
    a('v_add_u32 v%d, s21, v%d' % (vR4, vR4))
    a('v_mov_b32 v%d, 1026' % vCC)
    a('v_mul_u32_u24 v%d, v%d, v%d' % (vR4, vR4, vCC))
    a('buffer_load_ushort v%d, v%d, s[28:31], 0 offen offset:1024' % (vW5, vR4))
    a('buffer_load_ushort v%d, v%d, s[32:35], 0 offen offset:1024' % (vALT, vR4))
    a('v_and_b32 v%d, 1, v%d' % (vCC, vL))
    a('v_cmp_eq_u32 vcc, 1, v%d' % vCC)
    a('s_waitcnt vmcnt(0)')
    a('v_cndmask_b32 v%d, v%d, v%d, vcc' % (vW5, vW5, vALT))
    a('s_add_u32 s16, s53, 0x%x' % (WT + 512 * 8192))
    a('v_and_b32 v%d, 7, v%d' % (vCC, vL))
    a('v_lshlrev_b32 v%d, 1, v%d' % (vCC, vCC))
    a('v_lshl_add_u32 v%d, v%d, 4, v%d' % (vCC, vG, vCC))
    a('v_bfe_u32 v%d, v%d, 3, 1' % (vR4, vL))
    a('v_lshl_add_u32 v%d, v%d, 10, v%d' % (vCC, vR4, vCC))
    a('buffer_store_short v%d, v%d, s[36:39], s16 offen' % (vW5, vCC))
    a.label('K1_now5')
    a('buffer_load_dwordx4 %s, v%d, s[24:27], s17 offen' % (vr(X, 4), vA))
    a('buffer_load_dwordx4 %s, v%d, s[24:27], s17 offen offset:1024' % (vr(X + 4, 4), vA))
    a('buffer_load_dwordx4 %s, v%d, s[28:31], s22 offen' % (vr(Wd, 4), vB))
    a('buffer_load_dwordx4 %s, v%d, s[32:35], s22 offen' % (vr(Wd + 4, 4), vB))
    a('v_and_b32 v%d, 31, v%d' % (vC, vL))
    a('v_bfe_u32 v%d, v%d, 2, 2' % (vR4, vL))
    a('v_and_b32 v%d, 3, v%d' % (vCC, vL))
    a('v_cvt_f32_u32 v%d, v%d' % (vCF, vC))
    a('v_lshrrev_b32 v%d, 5, v%d' % (vHF, vL))
    a('v_cvt_f32_u32 v%d, v%d' % (vHF, vHF))
    gen_twiddle(a, TWC, TWS, vCF, vHF, T)
    a('v_mul_f32 v%d, %s, v%d' % (T, fl(1.0 / 32), vCF))
    a('v_mul_f32 v%d, 8.0, v%d' % (T + 1, vHF) if False else 'v_mul_f32 v%d, %s, v%d' % (T + 1, fl(8.0), vHF))
    a('v_mul_f32 v%d, v%d, v%d' % (T + 1, T + 1, T))
    for q in range(2):
        for e in range(8):
            a('v_fmamk_f32 v%d, v%d, %s, v%d' % (Dd + e, T, fl(float(16 * q + e)), T + 1))
        for e in range(8):
            a('v_cos_f32 v%d, v%d' % (F + e, Dd + e))
        for e in range(8):
            a('v_sin_f32 v%d, v%d' % (Dd + e, Dd + e))
        for e in range(4):
            a('v_cvt_pk_bf16_f32 v%d, v%d, v%d' % (B1c + 4 * q + e, F + 2 * e, F + 2 * e + 1))
        for e in range(4):
            a('v_cvt_pk_bf16_f32 v%d, -v%d, -v%d' % (B1s + 4 * q + e, Dd + 2 * e, Dd + 2 * e + 1))
    a('v_and_b32 v%d, 15, v%d' % (T, vC))
    a('v_cvt_f32_u32 v%d, v%d' % (T, T))
    a('v_mul_f32 v%d, %s, v%d' % (T, fl(1.0 / 32), T))
    a('v_mul_f32 v%d, 4.0, v%d' % (T + 1, vHF))
    a('v_mul_f32 v%d, v%d, v%d' % (T + 1, T + 1, T))
    a('v_lshrrev_b32 v%d, 4, v%d' % (T + 2, vC))
    a('v_cvt_f32_u32 v%d, v%d' % (T + 2, T + 2))
    a('v_fmamk_f32 v%d, v%d, %s, v%d' % (T + 1, T + 2, fl(0.25), T + 1))
    for i in range(16):
        a('v_fmamk_f32 v%d, v%d, %s, v%d' % (Dd + i, T, fl(float(8 * (i >> 2) + (i & 3))), T + 1))
    for i in range(16):
        a('v_cos_f32 v%d, v%d' % (F + i, Dd + i))
    for i in range(16):
        a('v_sin_f32 v%d, v%d' % (Dd + i, Dd + i))
    for g in range(4):
        a('v_cvt_pk_bf16_f32 v%d, v%d, v%d' % (B2 + 4 * g, F + 4 * g, F + 4 * g + 1))
        a('v_cvt_pk_bf16_f32 v%d, v%d, v%d' % (B2 + 4 * g + 1, F + 4 * g + 2, F + 4 * g + 3))
        a('v_cvt_pk_bf16_f32 v%d, v%d, v%d' % (B2 + 4 * g + 2, Dd + 4 * g, Dd + 4 * g + 1))
        a('v_cvt_pk_bf16_f32 v%d, v%d, v%d' % (B2 + 4 * g + 3, Dd + 4 * g + 2, Dd + 4 * g + 3))
    vXW, vXR = 244, 245
    a('s_lshl_b32 s16, s%d, 11' % sW)
    a('v_add_u32 v%d, s16, v%d' % (vXW, vA))
    a('v_lshrrev_b32 v%d, 1, v%d' % (T, vG))
    a('v_lshl_add_u32 v%d, v%d, 3, v%d' % (T, T, vR4))
    a('v_lshlrev_b32 v%d, 6, v%d' % (T, T))
    a('v_and_b32 v%d, 1, v%d' % (T + 1, vG))
    a('v_lshl_add_u32 v%d, v%d, 5, v%d' % (T, T + 1, T))
    a('v_lshl_add_u32 v%d, v%d, 3, v%d' % (T, vCC, T))
    a('v_add_u32 v%d, s16, v%d' % (vXR, T))
    stamp(a, 1)
    a('s_waitcnt vmcnt(2)')
    stamp(a, 2)
    unpack(a, F, X, 8)
    layernorm(a, F, Dd, P, T)
    a('ds_write_b128 v%d, %s offset:%d' % (vXW, vr(P, 4), XIMG))
    a('ds_write_b128 v%d, %s offset:%d' % (vXW, vr(P + 4, 4), XIMG + 1024))
    for q in range(2):
        for u in range(2):
            a('ds_read_b64_tr_b16 %s, v%d offset:%d' % (vr(A1 + 4 * q + 2 * u, 2), vXR, XIMG + q * 1024 + u * 256))
    unpack(a, F, P, 8)
    a('s_lshr_b32 s16, s%d, 2' % sW)
    a('s_mul_i32 s16, s16, %d' % (2 * 4160))
    a('s_and_b32 s23, s%d, 3' % sW)
    a('s_mul_i32 s23, s23, 1040')
    a('s_add_u32 s16, s16, s23')
    a('v_add_u32 v%d, s16, v%d' % (vB, vA))
    a('s_waitcnt vmcnt(0)')
    a('ds_write_b128 v%d, %s offset:%d' % (vB, vr(Wd, 4), WIMG))
    a('ds_write_b128 v%d, %s offset:%d' % (vB, vr(Wd + 4, 4), WIMG + 4160))
    a('s_waitcnt lgkmcnt(2)')
    def stage1():
        for q in range(2):
            a('v_mfma_f32_32x32x16_bf16 %s, %s, %s, %s' % (vr(Tr, 16), vr(A1 + 4 * q, 4), vr(B1c + 4 * q, 4), '0' if q == 0 else vr(Tr, 16)))
            a('v_mfma_f32_32x32x16_bf16 %s, %s, %s, %s' % (vr(Ti, 16), vr(A1 + 4 * q, 4), vr(B1s + 4 * q, 4), '0' if q == 0 else vr(Ti, 16)))
    stage1()
    layernorm(a, F, Dd, P, T, alt=vALT)
    a('s_mul_i32 s16, s%d, 2112' % sW)
    a('v_add_u32 v%d, s16, v%d' % (vB, vA))
    a('ds_write_b128 v%d, %s offset:%d' % (vB, vr(P, 4), HIMG))
    a('ds_write_b128 v%d, %s offset:%d' % (vB, vr(P + 4, 4), HIMG + 1024))
    twiddle_pack(a, Tr, Ti, TWC, TWS, A2, TT)
    for g in range(4):
        a('v_mfma_f32_32x32x16_bf16 %s, %s, %s, %s' % (vr(D2, 16), vr(A2 + 4 * g, 4), vr(B2 + 4 * g, 4), '0' if g == 0 else vr(D2, 16)))
    a('v_cvt_pk_bf16_f32 v%d, v%d, v%d' % (vALT, vALT, vALT))
    a('s_and_b32 s16, s%d, 1' % sW)
    a('s_lshl_b32 s16, s16, 4')
    a('s_and_b32 s23, s%d, 6' % sW)
    a('s_add_u32 s16, s16, s23')
    a('v_mov_b32 v%d, s16' % T)
    a('v_mov_b32 v%d, 0' % (T + 1))
    a('s_mov_b64 s[40:41], exec')
    a('s_mov_b64 exec, 1')
    a('ds_write_b16 v%d, v%d offset:%d' % (T, vALT, NIMG))
    a('ds_write_b16 v%d, v%d offset:%d' % (T, T + 1, NIMG + 8))
    a('s_mov_b64 exec, s[40:41]')
    a('s_mul_i32 s16, s%d, 2056' % sW)
    a('v_lshlrev_b32 v%d, 6, v%d' % (T, vC))
    a('v_add_u32 v%d, s16, v%d' % (T, T))
    a('v_bfe_u32 v%d, v%d, 1, 3' % (T + 1, vL))
    a('v_lshrrev_b32 v%d, 5, v%d' % (T + 2, vL))
    a('v_xor_b32 v%d, v%d, v%d' % (T + 1, T + 1, T + 2))
    a('v_lshlrev_b32 v%d, 3, v%d' % (T + 1, T + 1))
    for g in range(4):
        a('v_xor_b32 v%d, %d, v%d' % (T + 2 + g, 16 * g, T + 1))
        a('v_add_u32 v%d, v%d, v%d' % (T + 2 + g, T + 2 + g, T))
    vHR, vZR, vWR, vZS, vWS = 246, 247, 248, 249, 250
    a('v_mul_u32_u24 v%d, 2112, v%d' % (vHR, vR4))
    a('v_lshl_add_u32 v%d, v%d, 5, v%d' % (vHR, vG, vHR))
    a('v_lshl_add_u32 v%d, v%d, 3, v%d' % (vHR, vCC, vHR))
    a('s_lshl_b32 s16, s%d, 8' % sW)
    a('v_add_u32 v%d, s16, v%d' % (vHR, vHR))
    a('v_lshrrev_b32 v%d, 1, v%d' % (TT, vG))
    a('v_lshl_add_u32 v%d, v%d, 1, v%d' % (TT, vR4, TT))
    a('v_mul_u32_u24 v%d, 2056, v%d' % (vZR, TT))
    a('v_lshl_add_u32 v%d, v%d, 6, v%d' % (vZR, vCC, vZR))
    a('v_lshrrev_b32 v%d, 1, v%d' % (TT, vCC))
    a('v_xor_b32 v%d, v%d, v%d' % (TT, TT, vG))
    a('v_and_b32 v%d, 1, v%d' % (TT, TT))
    a('v_lshl_add_u32 v%d, v%d, 3, v%d' % (vZR, TT, vZR))
    a('s_lshr_b32 s42, s%d, 1' % sW)
    a('s_and_b32 s43, s%d, 1' % sW)
    a('s_lshl_b32 s43, s43, 1')
    a('s_xor_b32 s44, s43, s42')
    a('s_lshl_b32 s45, s42, 8')
    a('s_lshl_b32 s46, s44, 4')
    a('s_add_u32 s46, s46, s45')
    a('s_xor_b32 s47, s46, 16')
    a('v_add_u32 v%d, s47, v%d' % (vZR + 5, vZR))
    a('v_add_u32 v%d, s46, v%d' % (vZR, vZR))
    a('v_and_b32 v%d, 1, v%d' % (TT, vG))
    a('v_lshl_add_u32 v%d, v%d, 2, v%d' % (TT, TT, vCC))
    a('v_lshlrev_b32 v%d, 15, v%d' % (vZS, TT))
    a('v_lshrrev_b32 v%d, 1, v%d' % (TT, vG))
    a('v_lshl_add_u32 v%d, v%d, 2, v%d' % (TT, TT, vR4))
    a('s_bfe_u32 s16, s%d, 0x30001' % sM2)
    a('v_xor_b32 v%d, s16, v%d' % (TT, TT))
    a('v_lshl_add_u32 v%d, v%d, 4, v%d' % (vZS, TT, vZS))
    a('s_lshl_b32 s48, s42, 5')
    a('s_lshl_b32 s16, s43, 3')
    a('s_add_u32 s48, s48, s16')
    a('s_lshl_b32 s48, s48, 15')
    a('s_lshl_b32 s16, s2, 7')
    a('s_add_u32 s48, s48, s16')
    a('s_add_u32 s48, s48, 0x%x' % ZG)
    a('s_add_u32 s49, s48, 0x%x' % (8 << 15))
    a('v_mul_u32_u24 v%d, 4160, v%d' % (vWR, vR4))
    a('v_mul_u32_u24 v%d, 1040, v%d' % (TT, vCC))
    a('v_add_u32 v%d, v%d, v%d' % (vWR, vWR, TT))
    a('v_lshrrev_b32 v%d, 1, v%d' % (TT, vG))
    a('v_lshl_add_u32 v%d, v%d, 9, v%d' % (vWR, TT, vWR))
    a('v_and_b32 v%d, 1, v%d' % (TT, vG))
    a('v_lshl_add_u32 v%d, v%d, 3, v%d' % (vWR, TT, vWR))
    a('s_lshl_b32 s16, s%d, 5' % sW)
    a('v_add_u32 v%d, s16, v%d' % (vWR, vWR))
    a('v_lshl_add_u32 v%d, v%d, 2, v%d' % (TT, TT, vCC))
    a('v_lshlrev_b32 v%d, 13, v%d' % (vWS, TT))
    a('v_lshl_add_u32 v%d, v%d, 4, v%d' % (vWS, vR4, vWS))
    a('v_lshrrev_b32 v%d, 1, v%d' % (TT, vG))
    a('v_lshl_add_u32 v%d, v%d, 10, v%d' % (vWS, TT, vWS))
    a('s_lshl_b32 s50, s%d, 7' % sKR)
    a('s_lshl_b32 s16, s%d, 4' % sW)
    a('s_add_u32 s50, s50, s16')
    a('s_lshl_b32 s50, s50, 13')
    a('s_add_u32 s50, s50, s53')
    a('s_add_u32 s50, s50, 0x%x' % WT)
    a('s_add_u32 s51, s50, 0x%x' % (8 << 13))
    a('s_lshl_b32 s52, s%d, 19' % sW)
    a('s_lshl_b32 s16, s2, 11')
    a('s_add_u32 s52, s52, s16')
    if HG: a('s_add_u32 s52, s52, 0x%x' % HG)
    for g in range(4):
        a('v_cvt_pk_bf16_f32 v%d, v%d, v%d' % (TT + 2 * g, D2 + 4 * g, D2 + 4 * g + 1))
        a('v_cvt_pk_bf16_f32 v%d, v%d, v%d' % (TT + 2 * g + 1, D2 + 4 * g + 2, D2 + 4 * g + 3))
        a('ds_write_b64 v%d, %s offset:%d' % (T + 2 + g, vr(TT + 2 * g, 2), ZIMG))
    a('s_waitcnt lgkmcnt(0)')
    stamp(a, 3)
    a('s_barrier')
    for i in range(2):
        for u in range(2):
            a('ds_read_b64_tr_b16 %s, v%d offset:%d' % (vr(O + 4 * i + 2 * u, 2), vHR, HIMG + u * 4 * 2112 + i * 128))
    for i in range(2):
        for rho in range(2):
            a('ds_read_b64_tr_b16 %s, v%d offset:%d' % (vr(O + 8 + 4 * i + 2 * rho, 2), vZR + 5 * i, ZIMG + rho * 1024))
    for i in range(2):
        for u in range(2):
            a('ds_read_b64_tr_b16 %s, v%d offset:%d' % (vr(O + 16 + 4 * i + 2 * u, 2), vWR, WIMG + u * 256 + i * 16))
    a('s_waitcnt lgkmcnt(10)')
    a('buffer_store_dwordx4 %s, v%d, s[36:39], s52 offen' % (vr(O, 4), vA))
    a('s_waitcnt lgkmcnt(8)')
    a('buffer_store_dwordx4 %s, v%d, s[36:39], s52 offen offset:1024' % (vr(O + 4, 4), vA))
    a('s_waitcnt lgkmcnt(6)')
    a('buffer_store_dwordx4 %s, v%d, s[36:39], s48 offen' % (vr(O + 8, 4), vZS))
    a('s_waitcnt lgkmcnt(4)')
    a('buffer_store_dwordx4 %s, v%d, s[36:39], s49 offen' % (vr(O + 12, 4), vZS))
    a('s_waitcnt lgkmcnt(2)')
    a('buffer_store_dwordx4 %s, v%d, s[36:39], s50 offen' % (vr(O + 16, 4), vWS))
    a('s_waitcnt lgkmcnt(0)')
    a('buffer_store_dwordx4 %s, v%d, s[36:39], s51 offen' % (vr(O + 20, 4), vWS))
    stamp(a, 4)
    if DIAG[0]:
        a('s_waitcnt vmcnt(0)')
        stamp(a, 5)
        stamp_out(a, 0, sW, 36, 6, v=100)
        a('s_mov_b64 exec, -1')
    a('s_cmp_lg_u32 s%d, 0' % sW)
    a('s_cbranch_scc1 K1_end')
    a('s_mov_b64 exec, 15')
    a('v_lshlrev_b32 v%d, 6, v%d' % (vB, vL))
    a('v_mov_b32 v%d, 0' % vC)
    a('s_lshl_b32 s16, s2, 8')
    a('s_add_u32 s16, s16, 0x%x' % FLAGS)
    a('buffer_store_dword v%d, v%d, s[36:39], s16 offen' % (vC, vB))
    a('s_mov_b64 exec, 3')
    a('ds_read_b128 %s, v%d offset:%d' % (vr(X, 4), vA, NIMG))
    a('s_lshl_b32 s16, s2, 5')
    a('s_add_u32 s16, s16, 0x%x' % ZN)
    a('s_waitcnt lgkmcnt(0)')
    a('buffer_store_dwordx4 %s, v%d, s[36:39], s16 offen' % (vr(X, 4), vA))
    a.label('K1_end')
    a('s_endpgm')
    return dict(name=name, grid=256, block=512, lds=K1_LDS, vgpr=256, sgpr=100)
```

```python
import re
TRANS = ('v_exp_f32', 'v_log_f32', 'v_rcp_f32', 'v_rsq_f32', 'v_sqrt_f32', 'v_sin_f32', 'v_cos_f32', 'v_rcp_iflag_f32')
REG = re.compile(r'^-?\|?(?:abs\()?([vas])(?:(\d+)|\[(\d+):(\d+)\])\)?\|?$')
def regs_of(tok):
    tok = tok.strip()
    if tok in ('vcc', 'vcc_lo', 'vcc_hi'): return {('s', 'vcc')}
    if tok in ('exec', 'exec_lo', 'exec_hi'): return {('s', 'exec')}
    if tok == 'm0': return {('s', 'm0')}
    m = REG.match(tok)
    if not m: return set()
    k = m.group(1)
    if m.group(2) is not None: return {(k, int(m.group(2)))}
    return {(k, i) for i in range(int(m.group(3)), int(m.group(4)) + 1)}

class I:
    __slots__ = ('text', 'op', 'cls', 'wr', 'rd', 'A', 'B', 'C', 'passes', 'states', 'label', 'target', 'dpp', 'lds', 'widestore', 'data', 'uncond', 'end', 'movebits', 'lanesel')
def split_ops(s):
    out = []; depth = 0; cur = ''
    for ch in s:
        if ch in '[(': depth += 1
        if ch in '])': depth -= 1
        if ch == ',' and depth == 0:
            out.append(cur.strip()); cur = ''
        else: cur += ch
    if cur.strip(): out.append(cur.strip())
    return out
def parse(line):
    i = I(); i.text = line
    i.label = None; i.target = None; i.cls = 'other'; i.wr = set(); i.rd = set(); i.A = i.B = i.C = set(); i.passes = 0
    i.states = 1; i.dpp = False; i.lds = False; i.widestore = False; i.data = set(); i.uncond = False; i.end = False; i.movebits = False; i.lanesel = set()
    s = line.split(';')[0].strip()
    if not s or s.startswith('.'):
        i.op = ''; i.states = 0; return i
    if s.endswith(':'):
        i.op = ''; i.label = s[:-1]; i.states = 0; return i
    parts = s.split(None, 1)
    op = parts[0]; i.op = op
    rest = parts[1] if len(parts) > 1 else ''
    ops = split_ops(rest)
    mods = ''
    if ops:
        toks = ops[-1].split()
        ops[-1] = toks[0]; mods = ' '.join(toks[1:])
    R = [regs_of(o) for o in ops]
    base = re.sub(r'_(e32|e64|dpp|sdwa)$', '', op)
    if op == 's_nop':
        i.states = int(ops[0], 0) + 1
    elif op.startswith('s_cbranch') or op == 's_branch':
        i.target = ops[0]; i.uncond = op == 's_branch'
    elif op == 's_endpgm':
        i.end = True
    elif op.startswith('v_mfma'):
        i.cls = 'mfma'; i.wr = R[0]; i.A = R[1]; i.B = R[2]; i.C = R[3]; i.rd = R[1] | R[2] | R[3]
        i.passes = 8 if '32x32' in op else 4
    elif op.startswith('v_'):
        i.cls = 'valu'
        i.dpp = '_dpp' in op or 'quad_perm' in mods or 'row_' in mods
        if 'dst_sel:WORD' in mods or 'dst_sel:BYTE' in mods: i.movebits = True
        if base.startswith('v_cmp'):
            i.wr = R[0]; i.rd = set().union(*R[1:])
        elif base in ('v_readfirstlane_b32', 'v_readlane_b32'):
            i.wr = R[0]; i.rd = set().union(*R[1:]); i.cls = 'readlane'
            if len(R) > 2: i.lanesel = R[2]
        elif base == 'v_writelane_b32':
            i.wr = R[0]; i.rd = set().union(*R); i.lanesel = R[2]
        elif 'permlane' in base and 'swap' in base:
            i.wr = R[0] | R[1]; i.rd = R[0] | R[1]; i.cls = 'permlane'
        elif base in ('v_add_co_u32', 'v_sub_co_u32', 'v_addc_co_u32', 'v_subb_co_u32', 'v_mad_u64_u32', 'v_div_scale_f32'):
            i.wr = R[0] | R[1]; i.rd = set().union(*R[2:])
        else:
            i.wr = R[0]; i.rd = set().union(*R[1:]) if len(R) > 1 else set()
            if base in ('v_fmac_f32', 'v_pk_fmac_f16', 'v_dot2c_f32_bf16', 'v_mac_f32') or i.dpp or 'UNUSED_PRESERVE' in mods: i.rd |= R[0]
            if base == 'v_cndmask_b32' and len(R) == 3: i.rd |= {('s', 'vcc')}
        if base in TRANS: i.cls = 'trans'
    elif op.startswith('buffer_') or op.startswith('global_') or op.startswith('flat_'):
        i.cls = 'vmem'
        lds = ' lds' in (' ' + mods) or 'load_lds' in op
        i.lds = lds
        if op in ('buffer_wbl2', 'buffer_inv'):
            pass
        elif 'load' in op and not lds:
            i.wr = R[0]; i.rd = set().union(*R[1:])
            if 'd16' in op: i.rd |= R[0]
        elif 'load' in op:
            i.rd = set().union(*R) | {('s', 'm0')}
        elif 'store' in op or 'atomic' in op:
            i.rd = set().union(*R)
            if op.startswith('buffer_'): i.data = R[0]
            else: i.data = R[1] if 'store' in op or len(R) == 3 else R[2]
            if 'atomic' in op and 'sc0' in mods: i.wr = R[0]
            if 'x3' in op or 'x4' in op: i.widestore = True
    elif op.startswith('ds_'):
        i.cls = 'ds'
        if 'read' in op or 'permute' in op or 'swizzle' in op:
            i.wr = R[0]; i.rd = set().union(*R[1:])
            if 'd16' in op: i.rd |= R[0]
        else:
            i.rd = set().union(*R)
    elif op.startswith('s_'):
        i.cls = 'salu'
        if op.startswith('s_cmp') or op in ('s_waitcnt', 's_barrier', 's_setprio', 's_sleep', 's_bitcmp0_b32', 's_bitcmp1_b32', 's_setreg_b32', 's_setreg_imm32_b32'):
            i.rd = set().union(*R) if R else set()
        else:
            i.wr = R[0] if R else set(); i.rd = set().union(*R[1:]) if len(R) > 1 else set()
            if 'saveexec' in op: i.wr = i.wr | {('s', 'exec')}
    return i

VALUS = ('valu', 'trans', 'readlane', 'permlane')
def isv(rs): return {r for r in rs if r[0] in 'va'}
def iss(rs): return {r for r in rs if r[0] == 's'}
def need(p, c):
    n = 0
    pv = p.cls in VALUS; cv = c.cls in VALUS
    if pv:
        w = isv(p.wr); ws = iss(p.wr)
        if w:
            if c.cls == 'mfma' and (w & c.rd): n = max(n, 2)
            if cv and c.dpp and (w & c.rd): n = max(n, 2)
            if c.cls == 'permlane' and (w & c.rd): n = max(n, 2)
            if c.cls == 'readlane' and (w & c.rd): n = max(n, 1)
            if p.cls == 'trans' and cv and (w & c.rd): n = max(n, 1)
            if p.movebits and cv and (w & (c.rd | c.wr)): n = max(n, 1)
        if ws:
            if (cv or c.cls == 'mfma') and (ws & c.rd): n = max(n, 2)
            if ws & c.lanesel: n = max(n, 4)
            if c.cls == 'vmem' and (ws & c.rd): n = max(n, 5)
            if c.cls == 'salu' and (ws & c.rd): n = max(n, 1)
    if p.cls == 'mfma':
        big = p.passes == 8
        if c.cls == 'mfma':
            if p.wr & (c.A | c.B): n = max(n, 12 if big else 8)
            if p.wr & c.C:
                if not (p.wr == c.C and p.passes == c.passes): n = max(n, 10 if big else 6)
            elif p.wr & c.wr:
                n = max(n, 10 if big else 6)
        elif cv or c.cls in ('vmem', 'ds'):
            if p.wr & (c.rd | c.wr): n = max(n, 12 if big else 8)
            if cv and (p.C & c.wr): n = max(n, 7 if big else 3)
    if p.cls == 'vmem' and p.widestore and (p.data & c.wr):
        n = max(n, 2 if cv else 1)
    if p.cls == 'salu' and ('s', 'm0') in p.wr and c.cls == 'vmem' and c.lds: n = max(n, 1)
    return n
MAXD = 12
def fix(lines, verbose=False):
    ins = [parse(l) for l in lines]
    total = 0
    while True:
        labels = {x.label: k for k, x in enumerate(ins) if x.label}
        add = {}
        for k, p in enumerate(ins):
            if p.cls not in ('valu', 'trans', 'readlane', 'permlane', 'mfma', 'vmem', 'salu'): continue
            if p.cls == 'salu' and ('s', 'm0') not in p.wr: continue
            if p.cls == 'vmem' and not p.widestore: continue
            lim = MAXD if p.cls == 'mfma' else 5
            stack = [(k + 1, 0)]; seen = set()
            while stack:
                j, d = stack.pop()
                while j < len(ins) and d < lim:
                    if (j, d) in seen: break
                    seen.add((j, d))
                    c = ins[j]
                    if c.op:
                        n = need(p, c)
                        if n > d:
                            add[j] = max(add.get(j, 0), n - d)
                            break
                        if c.end: break
                        d += c.states
                        if c.target is not None:
                            if c.target in labels: stack.append((labels[c.target], d))
                            if c.uncond: break
                    j += 1
        if not add: break
        last = -100
        new = []
        done = {}
        for j in sorted(add):
            if j - last > 14:
                done[j] = add[j]; last = j
        for j, x in enumerate(ins):
            if j in done:
                n = done[j]; total += n
                if verbose: print('pad %d before: %s' % (n, x.text.strip()))
                new.append(parse('    s_nop %d' % (n - 1)))
            new.append(x)
        ins = new
    return [x.text for x in ins], total
```

```python
import sys
from gen_common import *
import hazard
from gen_k1 import gen_k1
from gen_gemm import *
from gen_col import gen_col, col_body
from gen_c2r import gen_c2r, c2r_body

def build(parts, out, quiet=False):
    body = Asm()
    infos = []
    for g in parts:
        k = Asm()
        info = g(k)
        lines, n = hazard.fix(k.lines)
        info['pads'] = n
        info['ninstr'] = sum(1 for l in lines if l.startswith('    ') and not l.strip().startswith(';'))
        body.lines += lines
        infos.append(info)
    head = Asm()
    for i in infos:
        for _ in range(i.get('times', 1)):
            head.raw('; @launch kernel=%s grid=(%d,1,1) block=(%d,1,1) lds=%d' % (i['name'], i['grid'], i['block'], i['lds']))
    head.raw('.amdgcn_target "amdgcn-amd-amdhsa--gfx950"')
    tail = Asm()
    for i in infos:
        kernel_desc(tail, i['name'], i['vgpr'], i['sgpr'], i.get('accum'))
    open(out, 'w').write(head.text() + body.text() + tail.text())
    if not quiet:
        for i in infos: print(i)

if __name__ == '__main__':
    DIAG[0] = 'diag' in sys.argv
    build([gen_k1, lambda a: gen_k2(a, shape=16), gen_c2r, gen_g2], 'full.s')
```

```python
from gen_common import *
import math
STAGE = 32768

def order(T, P, D, phi, fc=0):
    keys = []
    for s in range(T):
        lead = (s % P) == phi and s >= fc
        keys.append((max(s - D, fc - .5) if lead else s, 0 if lead else 1, s))
    keys.sort()
    return [k[2] for k in keys]

def gemm_loader(a, pfx, mode, T, NBUF, P, D, sW, sPhi, sAbase, sBbase, srdA, srdB, prio=0, shape=32, first_common=0):
    pitch = 7168 if mode == 'g1' else 4096
    vL, vT, vU, vA, vB = 1, 2, 3, 10, 14
    if prio: a('s_setprio %d' % prio)
    a('v_and_b32 v%d, 63, v0' % vL)
    a('s_and_b32 s40, s%d, 3' % sW)
    a('v_lshrrev_b32 v%d, 4, v%d' % (vT, vL))
    a('v_lshlrev_b32 v%d, 2, v%d' % (vU, vT))
    a('v_xor_b32 v%d, v%d, v%d' % (vU, vU, vL))
    a('v_and_b32 v%d, 15, v%d' % (vU, vU))
    a('v_lshlrev_b32 v%d, 4, v%d' % (vU, vU))
    if mode == 'g1':
        a('v_and_b32 v%d, 1, v%d' % (vA, vT))
        a('v_lshrrev_b32 v%d, 1, v%d' % (vT, vT))
        a('v_lshl_add_u32 v%d, v%d, 6, v%d' % (vT, vT, vA))
        a('s_mul_i32 s41, s40, %d' % (4 * pitch))
        rowi = [0, 128, 2, 130]
    else:
        a('s_mul_i32 s41, s40, %d' % (16 * pitch))
        rowi = [0, 4, 8, 12]
    a('s_add_u32 s41, s41, s%d' % sAbase)
    a('v_mul_u32_u24 v%d, %d, v%d' % (vT, pitch, vT))
    a('v_add3_u32 v%d, v%d, v%d, s41' % (vA, vT, vU))
    if shape == 16:
        a('v_xor_b32 v%d, 32, v%d' % (vU, vU))
        a('v_add3_u32 v%d, v%d, v%d, s41' % (vU, vT, vU))
    for i in range(1, 4):
        a('v_add_u32 v%d, 0x%x, v%d' % (vA + i, rowi[i] * pitch - i * 1024, vU if (shape == 16 and i >= 2) else vA))
    a('s_lshl_b32 s42, s40, 12')
    a('s_add_u32 s41, s42, s%d' % sBbase)
    a('v_lshlrev_b32 v%d, 4, v%d' % (vB, vL))
    a('v_add_u32 v%d, s41, v%d' % (vB, vB))
    nreg = (T + 3) // 4
    TA, TB = 64, 72
    for phi in range(P):
        o = order(T, P, D, phi, first_common)
        if P > 1:
            a('s_cmp_lg_u32 s%d, %d' % (sPhi, phi))
            a('s_cbranch_scc1 %s_phi%d' % (pfx, phi))
        for r in range(nreg):
            v = 0; u = 0
            for b in range(4):
                if r * 4 + b < T:
                    t = o[r * 4 + b]
                    v |= t << (8 * b)
                    u |= (16 * (t >> 2) + (t & 3)) << (8 * b)
            a('s_mov_b32 s%d, 0x%x' % (TB + r, v))
            if mode == 'g1': a('s_mov_b32 s%d, 0x%x' % (TA + r, u))
        if P > 1: a.label('%s_phi%d' % (pfx, phi))
    def issue(t):
        sel = (8 << 16) | (8 * (t % 4))
        a('s_bfe_u32 s44, s%d, 0x%x' % (TB + t // 4, sel))
        if mode == 'g1':
            a('s_bfe_u32 s43, s%d, 0x%x' % (TA + t // 4, sel))
            a('s_mul_i32 s43, s43, %d' % (16 * pitch))
        else:
            a('s_lshl_b32 s43, s44, 18')
        a('s_lshl_b32 s44, s44, 14')
        buf = (t % NBUF) * STAGE
        a('s_add_u32 m0, s42, %d' % buf)
        for i in range(4):
            a('buffer_load_dwordx4 v%d, %s, s43 offen offset:%d lds' % (vA + i, sr(srdA, 4), i * 1024))
        a('s_add_u32 m0, s42, %d' % (buf + 16384))
        for i in range(4):
            a('buffer_load_dwordx4 v%d, %s, s44 offen offset:%d lds' % (vB, sr(srdB, 4), i * 1024))
    for t in range(NBUF):
        issue(t)
    for t in range(-1, T - 1):
        inflight = max(0, min(T - 1, t + NBUF - 1) - (t + 1))
        if t == -1: inflight = NBUF - 1
        a('s_waitcnt vmcnt(%d)' % (8 * inflight))
        a('s_barrier')
        if (t + 1) % 4 == 0: stamp(a, (t + 1) // 4, 46)
        if t >= 0 and t + NBUF < T:
            issue(t + NBUF)
    stamp_out(a, 1 if mode == 'g1' else 3, sW, srdB, (T + 3) // 4, rb=46)

def gemm_main(a, pfx, mode, T, NBUF, sW, ACC, FR, vAd, init=None):
    vA0, vA1, vB, bA0, bA1, bB, vL, t0, t1 = range(vAd, vAd + 9)
    a('v_and_b32 v%d, 63, v0' % vL)
    a('s_and_b32 s40, s%d, 1' % sW)
    a('s_lshr_b32 s41, s%d, 1' % sW)
    a('v_bfe_u32 v%d, v%d, 2, 2' % (t0, vL))
    a('v_lshrrev_b32 v%d, 5, v%d' % (t1, vL))
    a('v_lshl_add_u32 v%d, v%d, 3, v%d' % (bA0, t1, t0))
    a('v_lshlrev_b32 v%d, 8, v%d' % (bA0, bA0))
    a('v_lshlrev_b32 v%d, 11, v%d' % (bB, t1))
    a('s_lshl_b32 s42, s40, 1')
    a('v_xor_b32 v%d, s42, v%d' % (t0, t0))
    a('v_lshl_add_u32 v%d, v%d, 6, v%d' % (bA0, t0, bA0))
    a('v_bfe_u32 v%d, v%d, 4, 1' % (t0, vL))
    a('v_lshl_add_u32 v%d, v%d, 5, v%d' % (bA0, t0, bA0))
    a('v_and_b32 v%d, 3, v%d' % (t0, vL))
    a('v_lshl_add_u32 v%d, v%d, 3, v%d' % (bA0, t0, bA0))
    a('v_xor_b32 v%d, 64, v%d' % (bA1, bA0))
    a('v_and_b32 v%d, 31, v%d' % (t0, vL))
    a('v_lshl_add_u32 v%d, v%d, 4, v%d' % (bB, t0, bB))
    a('s_lshl_b32 s42, s41, 10')
    a('s_add_u32 s42, s42, 16384')
    a('v_add_u32 v%d, s42, v%d' % (bB, bB))
    a('v_mov_b32 v%d, v%d' % (vA0, bA0))
    a('v_mov_b32 v%d, v%d' % (vA1, bA1))
    a('v_mov_b32 v%d, v%d' % (vB, bB))
    if init: init()
    def rd(s, ks):
        f = FR + 16 * s
        return ['ds_read_b128 %s, v%d offset:%d' % (vr(f + 8, 4), vB, ks * 4096),
                'ds_read_b64_tr_b16 %s, v%d offset:%d' % (vr(f, 2), vA0, ks * 4096),
                'ds_read_b64_tr_b16 %s, v%d offset:%d' % (vr(f + 2, 2), vA0, ks * 4096 + 1024),
                'ds_read_b64_tr_b16 %s, v%d offset:%d' % (vr(f + 4, 2), vA1, ks * 4096),
                'ds_read_b64_tr_b16 %s, v%d offset:%d' % (vr(f + 6, 2), vA1, ks * 4096 + 1024),
                'ds_read_b128 %s, v%d offset:%d' % (vr(f + 12, 4), vB, ks * 4096 + 512)]
    def mf(s, i, j):
        f = FR + 16 * s
        A = vr(f + 4 * i, 4); B = vr(f + 8 + 4 * j, 4)
        c = vr(ACC + 32 * i + 16 * j, 16)
        if mode == 'g2': A, B = B, A
        a('v_mfma_f32_32x32x16_bf16 %s, %s, %s, %s' % (c, A, B, c))
    def group(s, r):
        a('s_waitcnt lgkmcnt(3)'); mf(s, 0, 0); a(r[0]); a(r[1])
        a('s_waitcnt lgkmcnt(3)'); mf(s, 1, 0); a(r[2]); a(r[3])
        a('s_waitcnt lgkmcnt(4)'); mf(s, 0, 1); a(r[4]); a(r[5])
        mf(s, 1, 1)
    a('s_mov_b32 s43, 0')
    a('s_mov_b32 s44, %d' % (T - 1))
    stamp(a, 1)
    a('s_barrier')
    stamp(a, 2)
    for x in rd(0, 0): a(x)
    a.raw('.p2align 6')
    a.label(pfx + '_loop')
    for ks in range(3):
        group(ks & 1, rd((ks + 1) & 1, ks + 1))
    a('s_waitcnt lgkmcnt(3)'); mf(1, 0, 0)
    a('s_add_u32 s43, s43, %d' % STAGE)
    if NBUF & (NBUF - 1) == 0:
        a('s_and_b32 s43, s43, 0x%x' % (NBUF * STAGE - 1))
    else:
        a('s_cmp_eq_u32 s43, %d' % (NBUF * STAGE))
        a('s_cselect_b32 s43, 0, s43')
    a('v_add_u32 v%d, s43, v%d' % (vB, bB))
    a('v_add_u32 v%d, s43, v%d' % (vA0, bA0))
    a('v_add_u32 v%d, s43, v%d' % (vA1, bA1))
    a('s_waitcnt lgkmcnt(1)'); mf(1, 1, 0)
    a('s_sub_u32 s44, s44, 1')
    a('s_waitcnt lgkmcnt(0)')
    a('s_barrier')
    r = rd(0, 0)
    a(r[0]); a(r[1]); a(r[2])
    mf(1, 0, 1)
    a(r[3]); a(r[4]); a(r[5])
    a('s_cmp_lg_u32 s44, 0')
    mf(1, 1, 1)
    a('s_cbranch_scc1 %s_loop' % pfx)
    for ks in range(3):
        group(ks & 1, rd((ks + 1) & 1, ks + 1))
    a('s_waitcnt lgkmcnt(3)'); mf(1, 0, 0)
    a('s_waitcnt lgkmcnt(1)'); mf(1, 1, 0)
    a('s_waitcnt lgkmcnt(0)'); mf(1, 0, 1)
    mf(1, 1, 1)
    stamp(a, 3)

def gemm_main16(a, pfx, mode, T, NBUF, sW, ACC, FR, vAd, init=None):
    vA = vAd; vB = vAd + 4; bA = vAd + 5; bB = vAd + 9; vL = vAd + 10; t0 = vAd + 11; t1 = vAd + 12
    a('v_and_b32 v%d, 63, v0' % vL)
    a('s_and_b32 s40, s%d, 1' % sW)
    a('s_lshr_b32 s41, s%d, 1' % sW)
    a('v_bfe_u32 v%d, v%d, 2, 2' % (t0, vL))
    a('v_lshrrev_b32 v%d, 4, v%d' % (t1, vL))
    a('v_lshl_add_u32 v%d, v%d, 3, v%d' % (bA, t1, t0))
    a('v_lshlrev_b32 v%d, 8, v%d' % (bA, bA))
    a('v_lshlrev_b32 v%d, 11, v%d' % (bB, t1))
    a('s_lshl_b32 s42, s40, 1')
    a('v_xor_b32 v%d, s42, v%d' % (t0, t0))
    a('v_lshl_add_u32 v%d, v%d, 6, v%d' % (bA, t0, bA))
    a('v_and_b32 v%d, 1, v%d' % (t0, t1))
    a('v_lshl_add_u32 v%d, v%d, 5, v%d' % (bA, t0, bA))
    a('v_and_b32 v%d, 3, v%d' % (t0, vL))
    a('v_lshl_add_u32 v%d, v%d, 3, v%d' % (bA, t0, bA))
    for i in range(1, 4):
        a('v_xor_b32 v%d, %d, v%d' % (bA + i, 32 * i, bA))
    a('v_and_b32 v%d, 15, v%d' % (t0, vL))
    a('v_lshl_add_u32 v%d, v%d, 4, v%d' % (bB, t0, bB))
    a('s_lshl_b32 s42, s41, 10')
    a('s_add_u32 s42, s42, 16384')
    a('v_add_u32 v%d, s42, v%d' % (bB, bB))
    for i in range(5):
        a('v_mov_b32 v%d, v%d' % (vA + i, bA + i))
    if init: init()
    def rd(s, ks):
        f = FR + 32 * s
        A = lambda i, u: (('A', i), 'ds_read_b64_tr_b16 %s, v%d offset:%d' % (vr(f + 4 * i + 2 * u, 2), vA + i, ks * 8192 + u * 1024))
        B = lambda j: (('B', j), 'ds_read_b128 %s, v%d offset:%d' % (vr(f + 16 + 4 * j, 4), vB, ks * 8192 + j * 256))
        return [A(0, 0), A(0, 1), B(0), B(1), B(2), B(3), A(1, 0), A(1, 1), A(2, 0), A(2, 1), A(3, 0), A(3, 1)]
    def mf(s, i, j):
        f = FR + 32 * s
        A = vr(f + 4 * i, 4); B = vr(f + 16 + 4 * j, 4)
        c = vr(ACC + 16 * i + 4 * j, 4)
        if mode == 'g2': A, B = B, A
        a('v_mfma_f32_16x16x32_bf16 %s, %s, %s, %s' % (c, A, B, c))
    keys = [k for k, _ in rd(0, 0)]
    def group(s, r, start, hooks={}):
        done = 0; issued = 0
        for n in range(16):
            i, j = n >> 2, n & 3
            need = max(x for x, k in enumerate(keys) if k in (('A', i), ('B', j))) + 1
            if need > done:
                a('s_waitcnt lgkmcnt(%d)' % (12 - need + issued)); done = need
            mf(s, i, j)
            if n in hooks:
                if hooks[n](): done = 12
            if r is not None and n >= start and issued < 12:
                a(r[issued][1]); issued += 1
    a('s_mov_b32 s43, 0')
    a('s_mov_b32 s44, %d' % (T - 1))
    stamp(a, 1)
    a('s_barrier')
    stamp(a, 2)
    for x in rd(0, 0): a(x[1])
    a.raw('.p2align 6')
    a.label(pfx + '_loop')
    def adv():
        a('s_add_u32 s43, s43, %d' % STAGE)
        if NBUF & (NBUF - 1) == 0:
            a('s_and_b32 s43, s43, 0x%x' % (NBUF * STAGE - 1))
        else:
            a('s_cmp_eq_u32 s43, %d' % (NBUF * STAGE))
            a('s_cselect_b32 s43, 0, s43')
        a('s_sub_u32 s44, s44, 1')
    def upd(lo, hi):
        def f():
            for i in range(lo, hi):
                a('v_add_u32 v%d, s43, v%d' % (vA + i, bA + i))
        return f
    group(0, rd(1, 1), 0, {12: adv, 13: upd(0, 2), 14: upd(2, 4), 15: upd(4, 5)})
    def bar():
        a('s_waitcnt lgkmcnt(0)'); a('s_barrier'); return True
    group(1, rd(0, 0), 1, {1: bar, 14: lambda: a('s_cmp_lg_u32 s44, 0')})
    a('s_cbranch_scc1 %s_loop' % pfx)
    group(0, rd(1, 1), 0)
    group(1, None, 0)
    stamp(a, 3)

def g1_body(a, NBUF=4, P=4, D=3, prio=0, shape=32, fc=0):
    T = 32
    stamp(a, 0)
    a('s_load_dwordx4 s[4:7], s[0:1], %d' % KA_W1)
    a('s_load_dwordx2 s[10:11], s[0:1], %d' % KA_WS)
    sW, sFt, sDt, sPhi = 12, 13, 14, 15
    a('v_lshrrev_b32 v1, 6, v0')
    a('s_and_b32 s16, s2, 7')
    a('v_readfirstlane_b32 s%d, v1' % sW)
    a('s_lshr_b32 s17, s2, 3')
    a('s_lshr_b32 s18, s17, 2')
    a('s_and_b32 s19, s17, 3')
    a('s_lshr_b32 s20, s16, 1')
    a('s_mul_i32 s%d, s20, 7' % sFt)
    a('s_add_u32 s%d, s%d, s18' % (sFt, sFt))
    a('s_and_b32 s20, s16, 1')
    a('s_lshl_b32 s%d, s20, 2' % sDt)
    a('s_add_u32 s%d, s%d, s19' % (sDt, sDt))
    a('s_add_u32 s%d, s18, s19' % sPhi)
    a('s_and_b32 s%d, s%d, %d' % (sPhi, sPhi, P - 1))
    a('s_lshl_b32 s20, s%d, 8' % sFt)
    a('s_lshl_b32 s21, s%d, 19' % sDt)
    if HG: a('s_add_u32 s21, s21, 0x%x' % HG)
    a('s_waitcnt lgkmcnt(0)')
    srd_off(a, 24, 4, 5, 0, 2048 * 7168)
    srd_off(a, 28, 10, 11, 0, WS_USED)
    a('s_cmp_lt_u32 s%d, 4' % sW)
    a('s_cbranch_scc1 G1_compute')
    gemm_loader(a, 'G1', 'g1', T, NBUF, P, D, sW, sPhi, 20, 21, 24, 28, prio, shape, fc)
    a('s_endpgm')
    a.label('G1_compute')
    ACC, vAd, BT = 64, 2, 128
    FR = 32 if shape == 32 else 128
    vL = vAd + (6 if shape == 32 else 10)
    def init():
        srd_off(a, 32, 6, 7, 0, 7168)
        a('s_lshl_b32 s45, s40, 7')
        a('s_add_u32 s45, s45, s20')
        if shape == 32:
            a('v_lshrrev_b32 v20, 5, v%d' % vL)
            a('v_lshlrev_b32 v20, 3, v20')
            for i in range(2):
                for g in range(4):
                    a('buffer_load_dwordx2 %s, v20, s[32:35], s45 offen offset:%d' % (vr(BT + 8 * i + 2 * g, 2), 64 * i + 16 * g))
            a('s_waitcnt vmcnt(0)')
            for i in range(2):
                unpack(a, ACC + 32 * i, BT + 8 * i, 8)
                for r in range(16):
                    a('v_mov_b32 v%d, v%d' % (ACC + 32 * i + 16 + r, ACC + 32 * i + r))
        else:
            a('v_lshrrev_b32 v20, 4, v%d' % vL)
            a('v_lshlrev_b32 v20, 3, v20')
            for i in range(4):
                a('buffer_load_dwordx2 %s, v20, s[32:35], s45 offen offset:%d' % (vr(BT + 2 * i, 2), 32 * i))
            a('s_waitcnt vmcnt(0)')
            for i in range(4):
                unpack(a, ACC + 16 * i, BT + 2 * i, 2)
                for r in range(12):
                    a('v_mov_b32 v%d, v%d' % (ACC + 16 * i + 4 + r, ACC + 16 * i + (r & 3)))
    (gemm_main if shape == 32 else gemm_main16)(a, 'G1', 'g1', T, NBUF, sW, ACC, FR, vAd, init)
    c1 = -2.0 * math.sqrt(2.0 / math.pi) * math.log2(math.e)
    c2 = c1 * 0.044715
    vS = 20; K1 = 22; K2 = 24; ONE = 26
    a('v_mov_b32 v%d, %s' % (K1, fl(c1))); a('v_mov_b32 v%d, %s' % (K1 + 1, fl(c1)))
    a('v_mov_b32 v%d, %s' % (K2, fl(c2))); a('v_mov_b32 v%d, %s' % (K2 + 1, fl(c2)))
    a('v_mov_b32 v%d, 1.0' % ONE); a('v_mov_b32 v%d, 1.0' % (ONE + 1))
    a('v_lshrrev_b32 v%d, 5, v%d' % (vS, vL))
    a('v_lshlrev_b32 v%d, 11, v%d' % (vS, vS))
    a('v_and_b32 v%d, 31, v%d' % (vS + 1, vL))
    a('v_lshl_add_u32 v%d, v%d, 4, v%d' % (vS, vS + 1, vS))
    a('s_mul_i32 s45, s%d, %d' % (sDt, 448 * 2048))
    a('s_lshl_b32 s46, s%d, 15' % sFt)
    a('s_add_u32 s45, s45, s46')
    a('s_lshl_b32 s46, s40, 14')
    a('s_add_u32 s45, s45, s46')
    a('s_lshl_b32 s46, s41, 10')
    a('s_add_u32 s45, s45, s46')
    a('s_add_u32 s45, s45, 0x%x' % GG)
    TT = 128
    for blk in range(8):
        u = ACC + 8 * blk
        if shape == 32:
            octp, jj, swp = 4 * (blk >> 2) + 2 * (blk & 1), (blk >> 1) & 1, 'v_permlane32_swap_b32'
        else:
            octp, jj, swp = 2 * (blk >> 1), blk & 1, 'v_permlane16_swap_b32'
        t = TT + 16 * (blk & 3)
        o = t + 8
        for p in range(0, 8, 2):
            a('v_pk_mul_f32 %s, %s, %s' % (vr(t + p, 2), vr(u + p, 2), vr(u + p, 2)))
        for p in range(0, 8, 2):
            a('v_pk_fma_f32 %s, %s, %s, %s' % (vr(t + p, 2), vr(t + p, 2), vr(K2, 2), vr(K1, 2)))
        for p in range(0, 8, 2):
            a('v_pk_mul_f32 %s, %s, %s' % (vr(t + p, 2), vr(t + p, 2), vr(u + p, 2)))
        for p in range(8):
            a('v_exp_f32 v%d, v%d' % (t + p, t + p))
        for p in range(0, 8, 2):
            a('v_pk_add_f32 %s, %s, %s' % (vr(t + p, 2), vr(t + p, 2), vr(ONE, 2)))
        for p in range(8):
            a('v_rcp_f32 v%d, v%d' % (t + p, t + p))
        for p in range(0, 8, 2):
            a('v_pk_mul_f32 %s, %s, %s' % (vr(t + p, 2), vr(t + p, 2), vr(u + p, 2)))
        for p in range(4):
            a('v_cvt_pk_bf16_f32 v%d, v%d, v%d' % (o + p, t + 2 * p, t + 2 * p + 1))
        a('%s v%d, v%d' % (swp, o, o + 2))
        a('%s v%d, v%d' % (swp, o + 1, o + 3))
        a('s_add_u32 s46, s45, %d' % (octp * 2048))
        a('buffer_store_dwordx4 %s, v%d, s[28:31], s46 offen offset:%d' % (vr(o, 4), vS, jj * 512))
    stamp(a, 4)
    if DIAG[0]: a('s_waitcnt vmcnt(0)')
    stamp(a, 5)
    stamp_out(a, 1, sW, 28, 6)

def gen_g1(a, name='g1_kernel', **kw):
    NBUF = kw.get('NBUF', 4)
    kernel_begin(a, name)
    a('s_cmp_ge_u32 s2, 224')
    a('s_cbranch_scc1 G1_end')
    g1_body(a, **kw)
    a.label('G1_end')
    a('s_endpgm')
    return dict(name=name, grid=224, block=512, lds=NBUF * STAGE, vgpr=256 if DIAG[0] else 200, sgpr=100)

POLL_MAX = 400000
def poll_flag(a, lab, vT, vAddr, srd, soff, want, scnt):
    a('s_mov_b32 s%d, %d' % (scnt, POLL_MAX))
    a.label(lab)
    a('buffer_load_dword v%d, v%d, %s, s%d offen sc1' % (vT, vAddr, sr(srd, 4), soff))
    a('s_sub_u32 s%d, s%d, 1' % (scnt, scnt))
    a('s_cbranch_scc1 %s_out' % lab)
    a('s_waitcnt vmcnt(0)')
    a('v_readfirstlane_b32 s%d, v%d' % (scnt + 1, vT))
    a('s_cmp_lg_u32 s%d, %s' % (scnt + 1, want))
    a('s_cbranch_scc1 %s' % lab)
    a.label(lab + '_out')

def g2_body(a, NBUF=4, P=4, D=3, prio=0, fc=0, opt=2, inject=0):
    T = 28
    stamp(a, 0)
    a('s_load_dwordx4 s[4:7], s[0:1], %d' % KA_W2)
    a('s_load_dwordx2 s[8:9], s[0:1], %d' % KA_OUT)
    a('s_load_dwordx2 s[10:11], s[0:1], %d' % KA_WS)
    sW, sSt, sDt, sPhi, sKh = 12, 13, 14, 15, 22
    a('v_lshrrev_b32 v1, 6, v0')
    a('s_and_b32 s%d, s2, 1' % sKh)
    a('v_readfirstlane_b32 s%d, v1' % sW)
    a('s_bfe_u32 s16, s2, 0x20001')
    a('s_lshr_b32 s18, s2, 5')
    a('s_bfe_u32 s19, s2, 0x20003')
    if opt == 2:
        a('s_mov_b32 s%d, s18' % sDt)
        a('s_lshl_b32 s%d, s16, 2' % sSt)
        a('s_add_u32 s%d, s%d, s19' % (sSt, sSt))
    else:
        a('s_and_b32 s17, s16, 1')
        a('s_lshl_b32 s%d, s17, 2' % sDt)
        a('s_add_u32 s%d, s%d, s19' % (sDt, sDt))
        a('s_lshr_b32 s17, s16, 1')
        a('s_lshl_b32 s%d, s17, 3' % sSt)
        a('s_add_u32 s%d, s%d, s18' % (sSt, sSt))
    a('s_add_u32 s%d, s18, s19' % sPhi)
    a('s_and_b32 s%d, s%d, %d' % (sPhi, sPhi, P - 1))
    a('s_mul_i32 s20, s%d, %d' % (sKh, 1792 * 4096))
    a('s_lshl_b32 s17, s%d, 8' % sSt)
    a('s_add_u32 s20, s20, s17')
    a('s_mul_i32 s21, s%d, %d' % (sDt, 448 * 2048))
    a('s_mul_i32 s17, s%d, %d' % (sKh, 224 * 2048))
    a('s_add_u32 s21, s21, s17')
    a('s_add_u32 s21, s21, 0x%x' % GG)
    a('s_waitcnt lgkmcnt(0)')
    srd_off(a, 24, 4, 5, 0, 3584 * 4096)
    srd_off(a, 28, 10, 11, 0, WS_USED)
    a('s_cmp_lt_u32 s%d, 4' % sW)
    a('s_cbranch_scc1 G2_compute')
    gemm_loader(a, 'G2', 'g2', T, NBUF, P, D, sW, sPhi, 20, 21, 24, 28, prio, 16, fc)
    a('s_endpgm')
    a.label('G2_compute')
    ACC, FR, vAd = 64, 128, 2
    vL = vAd + 10
    vB2, vO, vLin, vW, vRd, vZ, BS = 16, 18, 19, 20, 21, 22, 32
    def init():
        srd_off(a, 32, 6, 7, 0, 4096)
        srd_off(a, 36, 8, 9, 0, 4 * MB)
        a('s_lshl_b32 s45, s%d, 7' % sSt)
        a('s_lshl_b32 s46, s40, 6')
        a('s_add_u32 s45, s45, s46')
        a('s_lshl_b32 s46, s%d, 5' % sKh)
        a('s_add_u32 s45, s45, s46')
        a('s_lshl_b32 s46, s45, 1')
        a('v_and_b32 v%d, 15, v%d' % (vZ, vL))
        a('v_lshlrev_b32 v%d, 1, v%d' % (vO, vZ))
        a('buffer_load_ushort v%d, v%d, s[32:35], s46 offen' % (vB2, vO))
        a('buffer_load_ushort v%d, v%d, s[32:35], s46 offen offset:32' % (vB2 + 1, vO))
        a('s_lshl_b32 s47, s45, 11')
        a('s_lshl_b32 s46, s%d, 8' % sDt)
        a('s_add_u32 s47, s47, s46')
        a('s_lshl_b32 s46, s41, 7')
        a('s_add_u32 s47, s47, s46')
        a('v_lshrrev_b32 v%d, 3, v%d' % (vO, vL))
        a('v_and_b32 v%d, 7, v%d' % (vRd, vL))
        a('v_xor_b32 v%d, v%d, v%d' % (vW, vRd, vO))
        a('v_lshlrev_b32 v%d, 4, v%d' % (vRd, vRd))
        a('v_lshlrev_b32 v%d, 4, v%d' % (vW, vW))
        a('s_lshl_b32 s46, s%d, 12' % sW)
        a('s_add_u32 s46, s46, %d' % ((T % NBUF) * STAGE))
        a('v_lshl_add_u32 v%d, v%d, 7, v%d' % (vW, vO, vW))
        a('v_lshl_add_u32 v%d, v%d, 11, v%d' % (vO, vO, vRd))
        a('v_add_u32 v%d, s46, v%d' % (vRd, vW))
        a('v_lshrrev_b32 v%d, 5, v%d' % (vW, vL))
        a('v_xor_b32 v%d, v%d, v%d' % (vW, vW, vZ))
        a('v_and_b32 v%d, 7, v%d' % (vW, vW))
        a('v_lshlrev_b32 v%d, 4, v%d' % (vW, vW))
        a('v_lshl_add_u32 v%d, v%d, 7, v%d' % (vW, vZ, vW))
        a('v_bfe_u32 v%d, v%d, 4, 1' % (vZ, vL))
        a('v_lshl_add_u32 v%d, v%d, 3, v%d' % (vW, vZ, vW))
        a('v_add_u32 v%d, s46, v%d' % (vW, vW))
        a('v_lshlrev_b32 v%d, 4, v%d' % (vLin, vL))
        a('v_mov_b32 v%d, 0' % vZ)
        a('s_add_u32 s48, s47, 0x%x' % BASE)
        for it in range(4):
            a('s_add_u32 s46, s48, %d' % (it * 16384))
            a('buffer_load_dwordx4 %s, v%d, s[28:31], s46 offen' % (vr(BS + 4 * it, 4), vO))
        for r in range(64):
            a('v_mov_b32 v%d, 0' % (ACC + r))
        a('s_lshl_b32 s49, s2, 2')
        a('s_add_u32 s49, s49, s%d' % sW)
        a('s_xor_b32 s50, s49, 4')
        a('s_lshl_b32 s51, s49, 6')
        a('s_lshl_b32 s52, s50, 6')
        a('s_add_u32 s51, s51, 0x%x' % FLAGS)
        a('s_add_u32 s52, s52, 0x%x' % FLAGS)
        a('s_lshl_b32 s49, s49, 13')
        a('s_lshl_b32 s50, s50, 13')
        a('s_add_u32 s49, s49, 0x%x' % PART)
        a('s_add_u32 s50, s50, 0x%x' % PART)
        a('s_add_u32 s53, s49, 4096')
        a('s_add_u32 s54, s50, 4096')
    gemm_main16(a, 'G2', 'g2', T, NBUF, sW, ACC, FR, vAd, init)
    a('s_waitcnt vmcnt(0)')
    a('s_cmp_eq_u32 s%d, 0' % sKh)
    a('s_cbranch_scc1 G2_k0')
    R = 128
    for kh in (1, 0):
        if kh == 0: a.label('G2_k0')
        keep = ACC + 32 * kh; send = ACC + 32 * (1 - kh)
        for i in range(8):
            a('buffer_store_dwordx4 %s, v%d, s[28:31], s%d offen offset:%d sc1' % (vr(send + 4 * i, 4), vLin, 49 if i < 4 else 53, (i & 3) * 1024))
        a('v_mov_b32 v%d, 1' % (vZ + 1))
        a('v_lshlrev_b32 v%d, 16, v%d' % (vB2, vB2))
        a('v_lshlrev_b32 v%d, 16, v%d' % (vB2 + 1, vB2 + 1))
        for r in range(32):
            a('v_add_f32 v%d, v%d, v%d' % (keep + r, keep + r, vB2 + (r >> 4)))
        a('s_waitcnt vmcnt(0)')
        a('s_mov_b64 exec, 1')
        a('buffer_store_dword v%d, v%d, s[28:31], s51 offen sc1' % (vZ + 1, vZ))
        poll_flag(a, 'G2_poll%d' % kh, vZ + 2, vZ, 28, 52, '1', 16)
        a('s_mov_b64 exec, -1')
        stamp(a, 4)
        for i in range(8):
            a('buffer_load_dwordx4 %s, v%d, s[28:31], s%d offen offset:%d sc1' % (vr(R + 4 * i, 4), vLin, 50 if i < 4 else 54, (i & 3) * 1024))
        for i in range(8):
            a('s_waitcnt vmcnt(%d)' % (7 - i))
            u = keep + 4 * i
            a('v_pk_add_f32 %s, %s, %s' % (vr(u, 2), vr(u, 2), vr(R + 4 * i, 2)))
            a('v_pk_add_f32 %s, %s, %s' % (vr(u + 2, 2), vr(u + 2, 2), vr(R + 4 * i + 2, 2)))
            a('v_cvt_pk_bf16_f32 v%d, v%d, v%d' % (u, u, u + 1))
            a('v_cvt_pk_bf16_f32 v%d, v%d, v%d' % (u + 1, u + 2, u + 3))
            a('v_xor_b32 v%d, %d, v%d' % (u + 2, 32 * (i & 3), vW))
            a('ds_write_b64 v%d, %s offset:%d' % (u + 2, vr(u, 2), 2048 * (i >> 2)))
        if kh == 1: a('s_branch G2_fin')
    a.label('G2_fin')
    for it in range(4):
        a('ds_read_b128 %s, v%d offset:%d' % (vr(R + 4 * it, 4), vRd, 1024 * it))
    for it in range(4):
        A = ACC + 16 * it; B = A + 8
        unpack(a, A, BS + 4 * it, 4)
        a('s_waitcnt lgkmcnt(%d)' % (3 - it))
        unpack(a, B, R + 4 * it, 4)
        for j in range(0, 8, 2):
            a('v_pk_add_f32 %s, %s, %s' % (vr(A + j, 2), vr(A + j, 2), vr(B + j, 2)))
        if inject and it == 0:
            a('s_cmp_lg_u32 s2, 0')
            a('s_cselect_b32 s46, 0, %s' % fl(inject))
            a('v_add_f32 v%d, s46, v%d' % (A, A))
        for j in range(4):
            a('v_cvt_pk_bf16_f32 v%d, v%d, v%d' % (B + j, A + 2 * j, A + 2 * j + 1))
        a('s_add_u32 s46, s47, %d' % (it * 16384))
        a('buffer_store_dwordx4 %s, v%d, s[36:39], s46 offen' % (vr(B, 4), vO))
    if DIAG[0]: a('s_waitcnt vmcnt(0)')
    stamp(a, 5)
    stamp_out(a, 3, sW, 28, 6)

def gen_g2(a, name='g2_kernel', **kw):
    NBUF = kw.get('NBUF', 4)
    kernel_begin(a, name)
    a('s_cmp_ge_u32 s2, 256')
    a('s_cbranch_scc1 G2_end')
    g2_body(a, **kw)
    a.label('G2_end')
    a('s_endpgm')
    return dict(name=name, grid=256, block=512, lds=NBUF * STAGE, vgpr=256 if DIAG[0] else 200, sgpr=100)

def gen_k2(a, name='k2_kernel', **kw):
    from gen_col import col_body
    kernel_begin(a, name)
    a('s_cmp_lt_u32 s2, 224')
    a('s_cbranch_scc1 K2_g1')
    a('s_cmp_ge_u32 s2, 256')
    a('s_cbranch_scc1 G1_end')
    a('s_sub_u32 s3, s2, 224')
    col_body(a, 3)
    a.label('K2_g1')
    g1_body(a, **kw)
    a.label('G1_end')
    a('s_endpgm')
    return dict(name=name, grid=256, block=512, lds=131072, vgpr=256, sgpr=100)
```

```python
from gen_common import *
from gen_col import cap, interleave
import tables
MF = 'v_mfma_f32_32x32x16_bf16'
K1_SIZE = 16384 + 16896 + 16640 + 64 + 24576

def k1_body(a, LB=0, st='', extra_w=None, zero_flags=True):
    TABI = LB; HIMG = LB + 16384; ZIMG = HIMG + 16896; NIMG = ZIMG + 16640; WIMG = NIMG + 64
    sW = 12
    vL, vA, vG, vR4, vCC, vXW, vXR, vZW, vHR, vZR, vZS = range(1, 12)
    TT, F, X, P, CB, T, A2 = 16, 32, 64, 80, 96, 160, 224
    B1c, B1s, B2, TWC, TWS = CB, CB + 8, CB + 16, CB + 32, CB + 48
    stamp(a, 0)
    a('s_load_dwordx4 s[4:7], s[0:1], %d' % KA_X)
    a('s_load_dwordx2 s[8:9], s[0:1], %d' % KA_WI)
    a('s_load_dwordx2 s[10:11], s[0:1], %d' % KA_WS)
    a('v_lshrrev_b32 v%d, 6, v0' % vA)
    a('v_and_b32 v%d, 63, v0' % vL)
    a('v_readfirstlane_b32 s%d, v%d' % (sW, vA))
    a('v_lshlrev_b32 v%d, 4, v%d' % (vA, vL))
    a('v_lshrrev_b32 v%d, 4, v%d' % (vG, vL))
    a('v_bfe_u32 v%d, v%d, 2, 2' % (vR4, vL))
    a('v_and_b32 v%d, 3, v%d' % (vCC, vL))
    a('s_cmp_ge_u32 s%d, 4' % sW)
    a('s_cbranch_scc1 K1_w')
    a('s_lshr_b32 s13, s2, 5')
    a('s_lshl_b32 s13, s13, 19')
    a('s_lshl_b32 s14, s%d, 17' % sW)
    a('s_add_u32 s13, s13, s14')
    a('s_and_b32 s14, s2, 31')
    a('s_lshl_b32 s14, s14, 12')
    a('s_add_u32 s13, s13, s14')
    a('s_waitcnt lgkmcnt(0)')
    srd_off(a, 24, 4, 5, 0, 4 * MB)
    for i in range(4):
        a('buffer_load_dwordx4 %s, v%d, s[24:27], s13 offen offset:%d' % (vr(X + 4 * i, 4), vA, i * 1024))
    srd_off(a, 36, 10, 11, 0, WS_USED)
    a('s_mul_i32 s14, s%d, %d' % (sW, 2 * 2112))
    a('s_add_u32 s14, s14, %d' % HIMG)
    a('v_add_u32 v%d, s14, v%d' % (vXW, vA))
    a('v_lshrrev_b32 v%d, 1, v%d' % (TT, vG))
    a('v_lshl_add_u32 v%d, v%d, 3, v%d' % (TT, TT, vR4))
    a('v_lshlrev_b32 v%d, 6, v%d' % (TT, TT))
    a('v_and_b32 v%d, 1, v%d' % (TT + 1, vG))
    a('v_lshl_add_u32 v%d, v%d, 5, v%d' % (TT, TT + 1, TT))
    a('v_lshl_add_u32 v%d, v%d, 3, v%d' % (TT, vCC, TT))
    a('v_add_u32 v%d, s14, v%d' % (vXR, TT))
    a('s_mul_i32 s14, s%d, 4160' % sW)
    a('s_add_u32 s14, s14, %d' % ZIMG)
    a('v_lshlrev_b32 v%d, 3, v%d' % (TT, vL))
    a('v_add_u32 v%d, s14, v%d' % (vZW, TT))
    a('v_add_u32 v%d, %d, v%d' % (TT, TABI, vA) if TABI else 'v_mov_b32 v%d, v%d' % (TT, vA))
    a('s_barrier')
    for i in range(16):
        a('ds_read_b128 %s, v%d offset:%d' % (vr(CB + 4 * i, 4), TT, i * 1024))
    a('s_waitcnt vmcnt(2)')
    stamp(a, 1)
    S = TT + 2
    for p in range(2):
        if p: a('s_waitcnt vmcnt(0)')
        f = F + 16 * p
        unpack(a, f, X + 8 * p, 8)
        s_, q_ = S + 4 * p, S + 4 * p + 2
        a('v_pk_add_f32 %s, %s, %s' % (vr(s_, 2), vr(f, 2), vr(f + 2, 2)))
        a('v_pk_mul_f32 %s, %s, %s' % (vr(q_, 2), vr(f, 2), vr(f, 2)))
        a('v_pk_fma_f32 %s, %s, %s, %s' % (vr(q_, 2), vr(f + 2, 2), vr(f + 2, 2), vr(q_, 2)))
        for i in range(4, 16, 2):
            a('v_pk_add_f32 %s, %s, %s' % (vr(s_, 2), vr(s_, 2), vr(f + i, 2)))
            a('v_pk_fma_f32 %s, %s, %s, %s' % (vr(q_, 2), vr(f + i, 2), vr(f + i, 2), vr(q_, 2)))
    a0, a1 = S + 8, S + 9
    a('v_sub_f32 v%d, v%d, v%d' % (a0, S, S + 1))
    a('v_sub_f32 v%d, v%d, v%d' % (a1, S + 4, S + 5))
    a('v_add_f32 v%d, v%d, v%d' % (S, S, S + 1))
    a('v_add_f32 v%d, v%d, v%d' % (S + 4, S + 4, S + 5))
    a('v_add_f32 v%d, v%d, v%d' % (S + 2, S + 2, S + 3))
    a('v_add_f32 v%d, v%d, v%d' % (S + 6, S + 6, S + 7))
    for x, y in ((a0, a1), (S, S + 4), (S + 2, S + 6)):
        a('v_permlane32_swap_b32 v%d, v%d' % (x, y))
    for x, y in ((a0, a1), (S, S + 4), (S + 2, S + 6)):
        a('v_add_f32 v%d, v%d, v%d' % (x, x, y))
    a('v_permlane16_swap_b32 v%d, v%d' % (S, S + 2))
    a('v_add_f32_dpp v%d, v%d, v%d quad_perm:[1,0,3,2] row_mask:0xf bank_mask:0xf' % (a0, a0, a0))
    a('v_add_f32 v%d, v%d, v%d' % (S, S, S + 2))
    for pat0, pat1 in (('quad_perm:[2,3,0,1]', 'quad_perm:[1,0,3,2]'), ('row_half_mirror', 'quad_perm:[2,3,0,1]'), ('row_mirror', 'row_half_mirror'), ('row_bcast:15', 'row_mirror')):
        a('v_add_f32_dpp v%d, v%d, v%d %s row_mask:%s bank_mask:0xf' % (a0, a0, a0, pat0, '0xa' if 'bcast' in pat0 else '0xf'))
        a('v_add_f32_dpp v%d, v%d, v%d %s row_mask:0xf bank_mask:0xf' % (S, S, S, pat1))
    for i, ln in enumerate((0, 16, 32, 48)):
        a('v_readlane_b32 s%d, v%d, %d' % (16 + i, S, ln))
    a('v_readlane_b32 s20, v%d, 31' % a0)
    a('v_readlane_b32 s21, v%d, 63' % a0)
    K = TT + 2
    inv = fl(1.0 / 1024); eps = fl(1e-5)
    for p in range(2):
        k = K + 6 * p
        a('v_mov_b32 v%d, %s' % (k + 1, inv))
        a('v_mul_f32 v%d, s%d, v%d' % (k + 5, 16 + 2 * p, k + 1))
        a('v_mul_f32 v%d, s%d, v%d' % (k + 3, 17 + 2 * p, k + 1))
    for p in range(2):
        k = K + 6 * p
        a('v_fma_f32 v%d, -v%d, v%d, v%d' % (k + 3, k + 5, k + 5, k + 3))
    for p in range(2):
        k = K + 6 * p
        a('v_max_f32 v%d, 0, v%d' % (k + 3, k + 3))
    for p in range(2):
        k = K + 6 * p
        a('v_add_f32 v%d, %s, v%d' % (k, eps, k + 3))
    for p in range(2):
        k = K + 6 * p
        a('v_rsq_f32 v%d, v%d' % (k, k))
    for p in range(2):
        k = K + 6 * p
        a('v_mul_f32 v%d, v%d, v%d' % (k + 3, k + 3, k))
        a('v_mul_f32 v%d, -v%d, v%d' % (k + 2, k + 5, k))
    for p in range(2):
        k = K + 6 * p
        a('v_fmaak_f32 v%d, v%d, v%d, %s' % (k + 3, k + 3, k, eps))
        a('v_mul_f32 v%d, s%d, v%d' % (k + 1, 20 + p, k))
    for p in range(2):
        k = K + 6 * p
        a('v_rsq_f32 v%d, v%d' % (k + 4, k + 3))
    def xn(p):
        f = F + 16 * p; k = K + 6 * p
        for i in range(0, 16, 2):
            a('v_pk_fma_f32 %s, %s, %s, %s op_sel_hi:[1,0,0]' % (vr(f + i, 2), vr(f + i, 2), vr(k, 2), vr(k + 2, 2)))
        for i in range(8):
            a('v_cvt_pk_bf16_f32 v%d, v%d, v%d' % (P + 8 * p + i, f + 2 * i, f + 2 * i + 1))
        a('ds_write_b128 v%d, %s offset:%d' % (vXW, vr(P + 8 * p, 4), p * 2112))
        a('ds_write_b128 v%d, %s offset:%d' % (vXW, vr(P + 8 * p + 4, 4), p * 2112 + 1024))
        for q in range(2):
            for u in range(2):
                a('ds_read_b64_tr_b16 %s, v%d offset:%d' % (vr(X + 8 * p + 4 * q + 2 * u, 2), vXR, p * 2112 + q * 1024 + u * 256))
    xn(0); xn(1)
    stamp(a, 2)
    def st1(p):
        o = []
        t = T + 32 * p
        for q in range(2):
            o.append('%s %s, %s, %s, %s' % (MF, vr(t, 16), vr(X + 8 * p + 4 * q, 4), vr(B1c + 4 * q, 4), '0' if q == 0 else vr(t, 16)))
            o.append('%s %s, %s, %s, %s' % (MF, vr(t + 16, 16), vr(X + 8 * p + 4 * q, 4), vr(B1s + 4 * q, 4), '0' if q == 0 else vr(t + 16, 16)))
        return o
    def hrow(p):
        def g(t):
            f = F + 16 * p; k = K + 6 * p
            for i in range(16):
                t('v_mul_f32 v%d, v%d, v%d' % (f + i, f + i, k + 4))
            for i in range(8):
                t('v_cvt_pk_bf16_f32 v%d, v%d, v%d' % (P + 8 * p + i, f + 2 * i, f + 2 * i + 1))
            t('ds_write_b128 v%d, %s offset:%d' % (vXW, vr(P + 8 * p, 4), p * 2112))
            t('ds_write_b128 v%d, %s offset:%d' % (vXW, vr(P + 8 * p + 4, 4), p * 2112 + 1024))
        return g
    a('s_waitcnt lgkmcnt(6)')
    interleave(a, st1(0), cap(hrow(0)))
    a('s_waitcnt lgkmcnt(2)')
    interleave(a, st1(1), cap(hrow(1)))
    a('v_cvt_pk_bf16_f32 v%d, v%d, v%d' % (K + 1, K + 1, K + 7))
    a('s_lshl_b32 s14, s%d, 1' % sW)
    a('s_add_u32 s14, s14, %d' % NIMG)
    a('v_mov_b32 v%d, s14' % K)
    a('v_mov_b32 v%d, 0' % (K + 2))
    a('s_mov_b64 exec, 1')
    a('ds_write_b16 v%d, v%d' % (K, K + 1))
    a('ds_write_b16_d16_hi v%d, v%d offset:16' % (K, K + 1))
    a('ds_write_b16 v%d, v%d offset:8' % (K, K + 2))
    a('ds_write_b16 v%d, v%d offset:24' % (K, K + 2))
    a('s_mov_b64 exec, -1')
    TP = F
    twiddle_pack(a, T, T + 16, TWC, TWS, A2, TP, pk=True)
    def st2(p):
        t = T + 32 * p
        return ['%s %s, %s, %s, %s' % (MF, vr(t, 16), vr(B2 + 4 * g, 4), vr(A2 + 16 * p + 4 * g, 4), '0' if g == 0 else vr(t, 16)) for g in range(4)]
    interleave(a, st2(0), cap(lambda t: twiddle_pack(t, T + 32, T + 48, TWC, TWS, A2 + 16, TP, groups=[0])))
    twiddle_pack(a, T + 32, T + 48, TWC, TWS, A2 + 16, TP, groups=[1, 2, 3], pk=True)
    def zout(p):
        def g_(t):
            for g in range(4):
                d = T + 32 * p + 4 * g; o = F + 16 + 8 * p + 2 * g - 16 * p
                o = P + 8 * p + 2 * g
                t('v_cvt_pk_bf16_f32 v%d, v%d, v%d' % (o, d, d + 1))
                t('v_cvt_pk_bf16_f32 v%d, v%d, v%d' % (o + 1, d + 2, d + 3))
                t('ds_write_b64 v%d, %s offset:%d' % (vZW, vr(o, 2), p * 2080 + (g >> 1) * 1024 + (g & 1) * 512))
        return g_
    interleave(a, st2(1), cap(zout(0)))
    zout(1)(a)
    a('s_branch K1_fin')
    a.label('K1_w')
    tables.tab_srd(a, 40, 'k1')
    a('s_and_b32 s13, s%d, 3' % sW)
    a('s_lshl_b32 s14, s13, 12')
    a('s_add_u32 m0, s14, %d' % TABI)
    for i in range(4):
        a('buffer_load_dwordx4 v%d, s[40:43], s14 offen offset:%d lds' % (vA, i * 1024))
    a('s_and_b32 s15, s13, 1')
    a('s_lshr_b32 s16, s13, 1')
    a('s_and_b32 s17, s2, 3')
    a('s_bfe_u32 s18, s2, 0x30002')
    a('s_lshr_b32 s19, s2, 5')
    a('s_lshl_b32 s20, s17, 1')
    a('s_add_u32 s20, s20, s16')
    a('s_lshl_b32 s20, s20, 2')
    a('s_lshl_b32 s21, s18, 1')
    a('s_add_u32 s21, s21, s15')
    a('s_lshl_b32 s21, s21, 6')
    a('s_add_u32 s21, s21, s20')
    a('s_mul_i32 s21, s21, 1026')
    a('s_lshl_b32 s22, s19, 7')
    a('s_add_u32 s22, s22, s21')
    a('s_add_u32 s23, s22, %d' % (1024 * 1026))
    a('v_bfe_u32 v%d, v%d, 3, 2' % (TT, vL))
    a('v_lshrrev_b32 v%d, 5, v%d' % (TT + 1, vL))
    a('v_lshl_add_u32 v%d, v%d, 5, v%d' % (TT, TT + 1, TT))
    a('v_mul_u32_u24 v%d, 1026, v%d' % (TT, TT))
    a('v_and_b32 v%d, 7, v%d' % (TT + 1, vL))
    a('v_lshl_add_u32 v%d, v%d, 4, v%d' % (TT, TT + 1, TT))
    a('v_and_b32 v%d, -4, v%d' % (TT, TT))
    a('v_bfe_u32 v%d, v%d, 3, 1' % (TT + 7, vL))
    a('v_lshlrev_b32 v%d, 4, v%d' % (TT + 7, TT + 7))
    a('s_waitcnt lgkmcnt(0)')
    srd_off(a, 28, 6, 7, 0, 2048 * 1026)
    srd_off(a, 32, 8, 9, 0, 2048 * 1026)
    for src in range(4):
        a('buffer_load_dwordx4 %s, v%d, %s, s%d offen' % (vr(F + 6 * src, 4), TT, sr(28 + 4 * (src & 1), 4), 22 + (src >> 1)))
        a('buffer_load_dword v%d, v%d, %s, s%d offen offset:16' % (F + 6 * src + 4, TT, sr(28 + 4 * (src & 1), 4), 22 + (src >> 1)))
    srd_off(a, 36, 10, 11, 0, WS_USED)
    nx = extra_w(a) if extra_w else 0
    a('s_lshr_b32 s24, s18, 1')
    a('s_lshl_b32 s24, s24, 1')
    a('s_add_u32 s24, s24, s15')
    a('s_lshl_b32 s24, s24, 10')
    a('s_and_b32 s25, s18, 1')
    a('s_lshl_b32 s25, s25, 5')
    a('s_add_u32 s25, s25, s20')
    a('s_lshl_b32 s25, s25, 4')
    a('s_add_u32 s24, s24, s25')
    a('s_add_u32 s24, s24, 0x%x' % WT)
    a('s_mul_i32 s25, s13, 6144')
    a('s_add_u32 s25, s25, %d' % WIMG)
    a('v_lshrrev_b32 v%d, 3, v%d' % (TT + 2, vL))
    a('v_mul_u32_u24 v%d, 192, v%d' % (TT + 2, TT + 2))
    a('v_lshl_add_u32 v%d, v%d, 4, v%d' % (TT + 2, TT + 1, TT + 2))
    a('v_add_u32 v%d, s25, v%d' % (TT + 2, TT + 2))
    a('v_mul_u32_u24 v%d, 192, v%d' % (TT + 3, vR4))
    a('v_lshl_add_u32 v%d, v%d, 5, v%d' % (TT + 3, vG, TT + 3))
    a('v_lshl_add_u32 v%d, v%d, 3, v%d' % (TT + 3, vCC, TT + 3))
    a('v_add_u32 v%d, s25, v%d' % (TT + 3, TT + 3))
    a('v_lshlrev_b32 v%d, 5, v%d' % (TT + 4, vL))
    a('v_add_u32 v%d, s25, v%d' % (TT + 4, TT + 4))
    a('v_lshl_add_u32 v%d, v%d, 2, v%d' % (TT + 5, vG, vCC))
    a('v_lshlrev_b32 v%d, 5, v%d' % (TT + 5, TT + 5))
    a('v_lshl_add_u32 v%d, v%d, 3, v%d' % (TT + 5, vR4, TT + 5))
    a('v_add_u32 v%d, s25, v%d' % (TT + 5, TT + 5))
    a('v_lshrrev_b32 v%d, 2, v%d' % (TT + 6, vL))
    a('v_lshlrev_b32 v%d, 13, v%d' % (TT + 6, TT + 6))
    a('v_lshl_add_u32 v%d, v%d, 4, v%d' % (TT + 6, vCC, TT + 6))
    a('s_waitcnt vmcnt(%d)' % (8 + nx))
    a('s_barrier')
    stamp(a, 1)
    if zero_flags:
        a('s_cmp_lg_u32 s13, 0')
        a('s_cbranch_scc1 K1_nz')
        a('s_mov_b64 exec, 15')
        a('v_lshlrev_b32 v%d, 6, v%d' % (TT + 9, vL))
        a('v_mov_b32 v%d, 0' % (TT + 8))
        a('s_lshl_b32 s26, s2, 8')
        a('s_add_u32 s26, s26, 0x%x' % FLAGS)
        a('buffer_store_dword v%d, v%d, s[36:39], s26 offen' % (TT + 8, TT + 9))
        a('s_mov_b64 exec, -1')
        a.label('K1_nz')
    a('s_waitcnt vmcnt(%d)' % nx)
    stamp(a, 2)
    for src in range(4):
        f = F + 6 * src
        for i in range(4):
            a('v_alignbit_b32 v%d, v%d, v%d, v%d' % (f + i, f + i + 1, f + i, TT + 7))
        a('ds_write_b128 v%d, %s offset:%d' % (TT + 2, vr(f, 4), src * 8 * 192))
    a('s_cmp_lg_u32 s19, 7')
    a('s_cbranch_scc1 K1_no512')
    a('v_bfe_u32 v%d, v%d, 3, 2' % (TT + 8, vL))
    a('v_lshlrev_b32 v%d, 4, v%d' % (TT + 8, TT + 8))
    a('v_lshrrev_b32 v%d, 5, v%d' % (TT + 9, vL))
    a('v_lshl_add_u32 v%d, v%d, 3, v%d' % (TT + 8, TT + 9, TT + 8))
    a('s_add_u32 s26, s24, 0x%x' % (512 * 8192))
    a('s_mov_b32 exec_lo, 0x80808080')
    a('s_mov_b32 exec_hi, 0x80808080')
    for src in range(4):
        f = F + 6 * src + 4
        a('v_lshrrev_b32 v%d, v%d, v%d' % (f, TT + 7, f))
        a('buffer_store_short v%d, v%d, s[36:39], s26 offen offset:%d %s' % (f, TT + 8, 2 * src, st))
    a('s_mov_b64 exec, -1')
    a.label('K1_no512')
    for src in range(4):
        for r2 in range(2):
            a('ds_read_b64_tr_b16 %s, v%d offset:%d' % (vr(X + 4 * src + 2 * r2, 2), TT + 3, (src * 8 + r2 * 4) * 192))
    a('s_waitcnt lgkmcnt(0)')
    for src in range(4):
        for r2 in range(2):
            a('ds_write_b64 v%d, %s offset:%d' % (TT + 4, vr(X + 4 * src + 2 * r2, 2), r2 * 2048 + src * 8))
    for t in range(4):
        for r2 in range(2):
            a('ds_read_b64_tr_b16 %s, v%d offset:%d' % (vr(F + 4 * t + 2 * r2, 2), TT + 5, r2 * 2048 + t * 512))
    a('s_lshl_b32 s25, s19, 19')
    a('s_add_u32 s24, s24, s25')
    for t in range(4):
        a('s_waitcnt lgkmcnt(%d)' % (6 - 2 * t))
        a('buffer_store_dwordx4 %s, v%d, s[36:39], s24 offen %s' % (vr(F + 4 * t, 4), TT + 6, st))
        if t < 3: a('s_add_u32 s24, s24, 0x%x' % (16 * 8192))
    a.label('K1_fin')
    a('v_mul_u32_u24 v%d, 2112, v%d' % (vHR, vR4))
    a('v_lshl_add_u32 v%d, v%d, 5, v%d' % (vHR, vG, vHR))
    a('v_lshl_add_u32 v%d, v%d, 3, v%d' % (vHR, vCC, vHR))
    a('s_lshl_b32 s14, s%d, 8' % sW)
    a('s_add_u32 s14, s14, %d' % HIMG)
    a('v_add_u32 v%d, s14, v%d' % (vHR, vHR))
    a('v_mul_u32_u24 v%d, 4160, v%d' % (vZR, vR4))
    a('v_and_b32 v%d, 1, v%d' % (TT, vCC))
    a('v_mul_u32_u24 v%d, 2080, v%d' % (TT, TT))
    a('v_lshl_add_u32 v%d, v%d, 4, v%d' % (vZR, vG, vZR))
    a('v_lshrrev_b32 v%d, 1, v%d' % (TT + 1, vCC))
    a('v_lshl_add_u32 v%d, v%d, 3, v%d' % (TT, TT + 1, TT))
    a('s_lshl_b32 s14, s%d, 7' % sW)
    a('s_add_u32 s14, s14, %d' % ZIMG)
    a('v_add3_u32 v%d, v%d, v%d, s14' % (vZR, vZR, TT))
    a('s_bfe_u32 s14, s2, 0x30001')
    a('v_and_b32 v%d, 7, v%d' % (TT, vL))
    a('v_xor_b32 v%d, s14, v%d' % (TT, TT))
    a('v_lshlrev_b32 v%d, 4, v%d' % (TT, TT))
    a('v_lshrrev_b32 v%d, 3, v%d' % (vZS, vL))
    a('v_lshl_add_u32 v%d, v%d, 15, v%d' % (vZS, vZS, TT))
    a('s_lshl_b32 s14, s%d, 19' % sW)
    a('s_lshl_b32 s15, s2, 7')
    a('s_add_u32 s15, s15, s14')
    a('s_add_u32 s15, s15, 0x%x' % ZG)
    a('s_add_u32 s16, s15, 0x%x' % (8 << 15))
    a('s_lshl_b32 s17, s2, 11')
    a('s_add_u32 s17, s17, s14')
    if HG: a('s_add_u32 s17, s17, 0x%x' % HG)
    O = CB
    a('s_waitcnt lgkmcnt(0)')
    stamp(a, 3)
    a('s_barrier')
    for i in range(2):
        for u in range(2):
            a('ds_read_b64_tr_b16 %s, v%d offset:%d' % (vr(O + 4 * i + 2 * u, 2), vHR, u * 4 * 2112 + i * 128))
    for i in range(2):
        for rho in range(2):
            a('ds_read_b64_tr_b16 %s, v%d offset:%d' % (vr(O + 8 + 4 * i + 2 * rho, 2), vZR, rho * 1024 + i * 64))
    a('s_waitcnt lgkmcnt(6)')
    a('buffer_store_dwordx4 %s, v%d, s[36:39], s17 offen %s' % (vr(O, 4), vA, st))
    a('s_waitcnt lgkmcnt(4)')
    a('buffer_store_dwordx4 %s, v%d, s[36:39], s17 offen offset:1024 %s' % (vr(O + 4, 4), vA, st))
    a('s_waitcnt lgkmcnt(2)')
    a('buffer_store_dwordx4 %s, v%d, s[36:39], s15 offen %s' % (vr(O + 8, 4), vZS, st))
    a('s_waitcnt lgkmcnt(0)')
    a('buffer_store_dwordx4 %s, v%d, s[36:39], s16 offen %s' % (vr(O + 12, 4), vZS, st))
    a('s_cmp_lg_u32 s%d, 4' % sW)
    a('s_cbranch_scc1 K1_nn')
    a('s_mov_b64 exec, 3')
    a('v_add_u32 v%d, %d, v%d' % (TT, NIMG, vA))
    a('ds_read_b128 %s, v%d' % (vr(X, 4), TT))
    a('s_lshl_b32 s16, s2, 5')
    a('s_add_u32 s16, s16, 0x%x' % ZN)
    a('s_waitcnt lgkmcnt(0)')
    a('buffer_store_dwordx4 %s, v%d, s[36:39], s16 offen %s' % (vr(X, 4), vA, st))
    a('s_mov_b64 exec, -1')
    a.label('K1_nn')
    stamp(a, 4)
    if DIAG[0]:
        a('s_waitcnt vmcnt(0)')
        stamp(a, 5)
        stamp_out(a, 0, sW, 36, 6, v=100)
        a('s_mov_b64 exec, -1')

def gen_k1(a, name='k1_kernel', **kw):
    kernel_begin(a, name)
    a('s_cmp_ge_u32 s2, 256')
    a('s_cbranch_scc1 K1_end')
    k1_body(a, **kw)
    a.label('K1_end')
    a('s_endpgm')
    return dict(name=name, grid=256, block=512, lds=K1_SIZE, vgpr=256, sgpr=100)
```

```python
import numpy as np, struct
def bf16bits(x):
    u = np.asarray(x, dtype=np.float32).view(np.uint32).astype(np.uint64)
    return (((u + 0x7fff + ((u >> 16) & 1)) >> 16) & 0xffff).astype(np.uint32)
def f32bits(x): return np.asarray(x, dtype=np.float32).view(np.uint32)
L = np.arange(64); H = L >> 5; C = L & 31
def cs(rev):
    rev = np.mod(rev, 1.0)
    c = np.cos(2 * np.pi * rev); s = np.sin(2 * np.pi * rev)
    c[np.abs(c) < 1e-12] = 0; s[np.abs(s) < 1e-12] = 0
    return c, s
def pk(lo, hi): return bf16bits(lo) | (bf16bits(hi) << 16)
def frag(vals):
    return [pk(vals[2 * i], vals[2 * i + 1]) for i in range(4)]
def t_tw():
    c = []; s = []
    for i in range(16):
        n = 8 * (i >> 2) + 4 * H + (i & 3)
        a, b = cs(C * n / 1024.0); c.append(f32bits(a)); s.append(f32bits(b))
    return c + s
def t_t():
    c = []; s = []
    for i in range(16):
        n = 8 * (i >> 2) + 4 * H + (i & 3)
        a, b = cs((C + 32 * n) / 2048.0); c.append(f32bits(a)); s.append(f32bits(b))
    return c + s
def t_F(scale=1.0):
    fr = []; fi = []
    for q in range(4):
        cc = [cs((8 * q + 4 * H + e) * C / 32.0) for e in range(4)]
        fr += frag([x[0] * scale for x in cc] + [x[1] * scale for x in cc])
        fi += frag([-x[1] * scale for x in cc] + [x[0] * scale for x in cc])
    return fr, fi
def t_B1():
    bc = []; bs = []
    for q in range(2):
        cc = [cs((16 * q + 8 * H + e) * C / 32.0) for e in range(8)]
        bc += frag([x[0] for x in cc]); bs += frag([-x[1] for x in cc])
    return bc + bs
def t_B2():
    o = []
    rho = C >> 4; k2 = C & 15
    for g in range(4):
        cc = [cs((8 * g + 4 * H + e) * k2 / 32.0 + rho / 4.0) for e in range(4)]
        o += frag([x[0] for x in cc] + [x[1] for x in cc])
    return o
Fr, Fi = t_F()
Fs, _ = t_F(2.0 ** -20)
PARTS = [('B1', t_B1()), ('B2', t_B2()), ('TW', t_tw()), ('FR', Fr), ('FI', Fi), ('T', t_t()), ('FS', Fs)]
OFF = {}
words = []
for n, regs in PARTS:
    OFF[n] = len(words) * 4
    assert len(regs) % 4 == 0
    for q in range(len(regs) // 4):
        blk = np.stack(regs[4 * q:4 * q + 4], 1).astype(np.uint32)
        words += blk.reshape(-1).tolist()
TAB_BYTES = len(words) * 4
def emit(a):
    a.raw('.text')
    a.raw('.p2align 8')
    a.raw('.type fft_tables,@object')
    a.raw('fft_tables:')
    for i in range(0, len(words), 8):
        a.raw('.long ' + ','.join('0x%x' % w for w in words[i:i + 8]))
    a.raw('.size fft_tables, %d' % TAB_BYTES)
def tab_srd(a, d, uid):
    a('s_getpc_b64 s[%d:%d]' % (d, d + 1))
    a.label('TABPC_%s' % uid)
    a('s_add_u32 s%d, s%d, fft_tables-TABPC_%s' % (d, d, uid))
    a('s_addc_u32 s%d, s%d, 0' % (d + 1, d + 1))
    a('s_and_b32 s%d, s%d, 0xffff' % (d + 1, d + 1))
    a('s_mov_b32 s%d, 0x%x' % (d + 2, TAB_BYTES))
    a('s_mov_b32 s%d, 0x20000' % (d + 3))
if __name__ == '__main__':
    print(OFF, TAB_BYTES)
```

```python
import sys
from gen_common import *
import hazard
from gen_k1b import gen_k1, k1_body
import tables
from gen_gemm import *
from gen_col import gen_col, col_body
from gen_c2r import gen_c2r, c2r_body

def build(parts, out, quiet=False):
    body = Asm()
    infos = []
    for g in parts:
        k = Asm()
        info = g(k)
        lines, n = hazard.fix(k.lines)
        info['pads'] = n
        info['ninstr'] = sum(1 for l in lines if l.startswith('    ') and not l.strip().startswith(';'))
        body.lines += lines
        infos.append(info)
    head = Asm()
    for i in infos:
        for _ in range(i.get('times', 1)):
            head.raw('; @launch kernel=%s grid=(%d,1,1) block=(%d,1,1) lds=%d' % (i['name'], i['grid'], i['block'], i['lds']))
    head.raw('.amdgcn_target "amdgcn-amd-amdhsa--gfx950"')
    tail = Asm()
    tables.emit(tail)
    for i in infos:
        kernel_desc(tail, i['name'], i['vgpr'], i['sgpr'], i.get('accum'))
    open(out, 'w').write(head.text() + body.text() + tail.text())
    if not quiet:
        for i in infos: print(i)

if __name__ == '__main__':
    DIAG[0] = 'diag' in sys.argv
    build([gen_k1, lambda a: gen_k2(a, shape=16), gen_c2r, gen_g2], 'full.s')
    build([lambda a: gen_k1(a, st='sc1'), lambda a: gen_k2(a, shape=16), gen_c2r, gen_g2], 'fullb.s')
```

```python
from gen_common import *
MF = 'v_mfma_f32_32x32x16_bf16'
TT, IN, T1, T2, WR = 16, 32, 64, 96, 128
Fr, Fi, TWC, TWS, TC, TS = 160, 176, 192, 208, 224, 240
S2 = 50

def interleave(a, mf, va):
    n = len(mf); k = 0
    for i, m in enumerate(mf):
        a(m)
        e = (len(va) * (i + 1)) // n
        while k < e:
            a(va[k]); k += 1

def cap(f):
    t = Asm(); f(t); return [l.strip() for l in t.lines]

def s1(P, T):
    o = []
    for q in range(4):
        o.append('%s %s, %s, %s, %s' % (MF, vr(T, 16), vr(P + 4 * q, 4), vr(Fr + 4 * q, 4), '0' if q == 0 else vr(T, 16)))
        o.append('%s %s, %s, %s, %s' % (MF, vr(T + 16, 16), vr(P + 4 * q, 4), vr(Fi + 4 * q, 4), '0' if q == 0 else vr(T + 16, 16)))
    return o
def s2(P, T):
    o = []
    for q in range(4):
        o.append('%s %s, %s, %s, %s' % (MF, vr(T, 16), vr(Fr + 4 * q, 4), vr(P + 4 * q, 4), '0' if q == 0 else vr(T, 16)))
        o.append('%s %s, %s, %s, %s' % (MF, vr(T + 16, 16), vr(Fi + 4 * q, 4), vr(P + 4 * q, 4), '0' if q == 0 else vr(T + 16, 16)))
    return o

def fft_pair(a):
    for m in s1(IN, T1): a(m)
    interleave(a, s1(IN + 16, T2), cap(lambda t: twiddle_pack(t, T1, T1 + 16, TWC, TWS, IN, TT)))
    interleave(a, s2(IN, T1), cap(lambda t: twiddle_pack(t, T2, T2 + 16, TWC, TWS, IN + 16, TT)))
    for m in s2(IN + 16, T2): a(m)

def pointwise(a, pk=0):
    for g in range(4):
        for p in range(2):
            n = 4 * g + 2 * p
            Er, Ei, Or, Oi = [x + n for x in (T1, T1 + 16, T2, T2 + 16)]
            tc, ts = TC + n, TS + n
            w = WR + 8 * g + 4 * p
            for r in range(2):
                a('v_lshlrev_b32 v%d, 16, v%d' % (TT + r, w + 2 * r))
                a('v_and_b32 v%d, 0xffff0000, v%d' % (TT + 2 + r, w + 2 * r))
                a('v_lshlrev_b32 v%d, 16, v%d' % (TT + 4 + r, w + 2 * r + 1))
                a('v_and_b32 v%d, 0xffff0000, v%d' % (TT + 6 + r, w + 2 * r + 1))
            W1r, W1i, W2r, W2i, Ar, Ai = [TT + 2 * x for x in range(6)]
            def f(d, x, y, z, m=0):
                if pk:
                    if y == 2: a('v_pk_fma_f32 %s, %s, s[%d:%d], %s neg_lo:[0,0,1] neg_hi:[0,0,1]' % (vr(d, 2), vr(x, 2), S2, S2 + 1, vr(z, 2)))
                    else: a('v_pk_fma_f32 %s, %s, %s, %s%s' % (vr(d, 2), vr(x, 2), vr(y, 2), vr(z, 2), ' neg_lo:[1,0,0] neg_hi:[1,0,0]' if m else ''))
                    return
                for r in range(2):
                    if y == 2:
                        a('v_fma_f32 v%d, v%d, 2.0, -v%d' % (d + r, x + r, z + r))
                    elif d == z and not m:
                        a('v_fmac_f32 v%d, v%d, v%d' % (d + r, x + r, y + r))
                    else:
                        a('v_fma_f32 v%d, %sv%d, v%d, v%d' % (d + r, '-' if m else '', x + r, y + r, z + r))
            def mu(d, x, y):
                if pk:
                    a('v_pk_mul_f32 %s, %s, %s' % (vr(d, 2), vr(x, 2), vr(y, 2)))
                    return
                for r in range(2):
                    a('v_mul_f32 v%d, v%d, v%d' % (d + r, x + r, y + r))
            f(Ar, Or, tc, Er); f(Ai, Oi, tc, Ei)
            f(Ar, Oi, ts, Ar); f(Ai, Or, ts, Ai, 1)
            f(Er, Er, 2, Ar); f(Ei, Ei, 2, Ai)
            mu(Or, W1r, Ar); mu(Oi, W1r, Ai)
            f(Or, W1i, Ai, Or, 1); f(Oi, W1i, Ar, Oi)
            f(Ar, W2r, Er, Or); f(Ai, W2r, Ei, Oi)
            f(Ar, W2i, Ei, Ar, 1); f(Ai, W2i, Er, Ai)
            f(Or, Or, 2, Ar); f(Oi, Oi, 2, Ai)
            a('v_cvt_pk_bf16_f32 v%d, v%d, v%d' % (IN + 4 * g + p, TT + 8, TT + 9))
            a('v_cvt_pk_bf16_f32 v%d, -v%d, -v%d' % (IN + 4 * g + 2 + p, TT + 10, TT + 11))
            mu(Er, Or, tc); mu(Ei, Oi, tc)
            f(Er, Oi, ts, Er, 1); f(Ei, Or, ts, Ei)
            a('v_cvt_pk_bf16_f32 v%d, v%d, v%d' % (IN + 16 + 4 * g + p, T1 + n, T1 + n + 1))
            a('v_cvt_pk_bf16_f32 v%d, -v%d, -v%d' % (IN + 16 + 4 * g + 2 + p, T1 + 16 + n, T1 + 17 + n))

def col_body(a, sC):
    vL, vC, vH, vCF, vHF, vI, vI1, vW, vSW, vRe, vRo, vSt = range(1, 13)
    sW, sQk, sV, sB, sE, sK, sRd = 12, 13, 14, 15, 16, 17, 18
    a('s_load_dwordx2 s[10:11], s[0:1], %d' % KA_WS)
    a('v_lshrrev_b32 v%d, 6, v0' % vC)
    a('v_and_b32 v%d, 63, v0' % vL)
    a('v_readfirstlane_b32 s%d, v%d' % (sW, vC))
    a('s_lshr_b32 s%d, s%d, 3' % (sQk, sC))
    a('s_and_b32 s%d, s%d, 7' % (sV, sC))
    a('s_lshr_b32 s%d, s%d, 2' % (sB, sW))
    a('s_and_b32 s%d, s%d, 3' % (sE, sW))
    a('v_lshlrev_b32 v%d, 4, v%d' % (vW, vL))
    a('s_lshl_b32 s20, s%d, 17' % sC)
    a('s_lshl_b32 s21, s%d, 13' % sW)
    a('s_add_u32 s20, s20, s21')
    a('s_add_u32 s20, s20, 0x%x' % ZG)
    a('s_lshl_b32 s%d, s%d, 2' % (sK, sQk))
    a('s_add_u32 s%d, s%d, s%d' % (sK, sK, sE))
    a('s_lshl_b32 s%d, s%d, 5' % (sK, sK))
    a('s_lshl_b32 s22, s%d, 2' % sV)
    a('s_add_u32 s%d, s%d, s22' % (sK, sK))
    a('s_add_u32 s%d, s%d, s%d' % (sK, sK, sB))
    a('s_waitcnt lgkmcnt(0)')
    srd_off(a, 28, 10, 11, 0, WS_USED)
    def dma(rd):
        for hf in range(2):
            a('s_add_u32 m0, s21, %d' % (rd * 65536 + hf * 4096))
            a('s_add_u32 s22, s20, %d' % (rd * 65536 + hf * 4096))
            for i in range(4):
                a('buffer_load_dwordx4 v%d, s[28:31], s22 offen offset:%d lds' % (vW, i * 1024))
    def wload():
        a('s_lshl_b32 s22, s%d, 13' % sK)
        a('s_add_u32 s22, s22, 0x%x' % WT)
        a('s_add_u32 s23, s22, 4096')
        for i in range(8):
            a('buffer_load_dwordx4 %s, v%d, s[28:31], s%d offen offset:%d' % (vr(WR + 4 * i, 4), vW, 22 + (i >> 2), (i & 3) * 1024))
    dma(0)
    wload()
    dma(1)
    a('v_and_b32 v%d, 31, v%d' % (vC, vL))
    a('v_lshrrev_b32 v%d, 5, v%d' % (vH, vL))
    a('v_cvt_f32_u32 v%d, v%d' % (vCF, vC))
    a('v_cvt_f32_u32 v%d, v%d' % (vHF, vH))
    gen_F(a, Fr, Fi, vCF, vHF, TT)
    gen_twiddle(a, TWC, TWS, vCF, vHF, TT)
    a('v_mul_f32 v%d, %s, v%d' % (TT, fl(1.0 / 2048), vCF))
    a('v_fmamk_f32 v%d, v%d, %s, v%d' % (TT, vHF, fl(1.0 / 16), TT))
    for i in range(16):
        a('v_add_f32 v%d, %s, v%d' % (TS + i, fl((8 * (i >> 2) + (i & 3)) / 64.0), TT))
    for i in range(16):
        a('v_cos_f32 v%d, v%d' % (TC + i, TS + i))
    for i in range(16):
        a('v_sin_f32 v%d, v%d' % (TS + i, TS + i))
    a('s_mov_b32 s%d, 2.0' % S2)
    a('s_mov_b32 s%d, 2.0' % (S2 + 1))
    a('v_lshrrev_b32 v%d, 1, v%d' % (TT, vC))
    a('v_xor_b32 v%d, s%d, v%d' % (TT, sE, TT))
    a('v_and_b32 v%d, 7, v%d' % (TT, TT))
    a('v_lshlrev_b32 v%d, 4, v%d' % (TT, TT))
    a('v_lshl_add_u32 v%d, v%d, 7, v%d' % (TT, vC, TT))
    a('v_lshl_add_u32 v%d, v%d, 12, v%d' % (TT, vH, TT))
    a('s_lshl_b32 s22, s%d, 15' % sB)
    a('v_add_u32 v%d, s22, v%d' % (vI, TT))
    a('v_xor_b32 v%d, 64, v%d' % (vI1, vI))
    a('v_lshlrev_b32 v%d, 3, v%d' % (TT, vC))
    a('v_lshl_add_u32 v%d, v%d, 10, v%d' % (TT, vH, TT))
    a('s_lshl_b32 s22, s%d, 6' % sE)
    a('v_xor_b32 v%d, s22, v%d' % (TT, TT))
    a('s_lshl_b32 s22, s%d, 14' % sE)
    a('s_lshl_b32 s23, s%d, 2' % sB)
    a('s_add_u32 s22, s22, s23')
    a('v_add_u32 v%d, s22, v%d' % (vSW, TT))
    a('v_bfe_u32 v%d, v%d, 2, 2' % (TT, vL))
    a('v_lshrrev_b32 v%d, 4, v%d' % (TT + 1, vL))
    a('v_lshlrev_b32 v%d, 5, v%d' % (TT + 1, TT + 1))
    a('v_and_b32 v%d, 3, v%d' % (TT + 2, vL))
    a('v_lshl_add_u32 v%d, v%d, 3, v%d' % (TT + 1, TT + 2, TT + 1))
    a('v_lshlrev_b32 v%d, 6, v%d' % (TT + 3, TT))
    a('v_xor_b32 v%d, v%d, v%d' % (TT + 1, TT + 1, TT + 3))
    a('v_lshl_add_u32 v%d, v%d, 14, v%d' % (TT + 1, TT, TT + 1))
    a('s_lshl_b32 s22, s%d, 10' % sW)
    a('v_add_u32 v%d, s22, v%d' % (vRe, TT + 1))
    a('v_xor_b32 v%d, 128, v%d' % (vRo, vRe))
    a('v_lshrrev_b32 v%d, 2, v%d' % (TT, vL))
    a('v_lshlrev_b32 v%d, 12, v%d' % (TT, TT))
    a('v_lshl_add_u32 v%d, v%d, 4, v%d' % (vSt, TT + 2, TT))
    a('s_lshl_b32 s24, s%d, 19' % sW)
    a('s_lshl_b32 s22, s%d, 10' % sQk)
    a('s_add_u32 s24, s24, s22')
    a('s_lshl_b32 s22, s%d, 7' % sV)
    a('s_add_u32 s24, s24, s22')
    a('s_add_u32 s24, s24, 0x%x' % YG)
    a('s_mov_b32 s%d, 0' % sRd)
    a('s_waitcnt vmcnt(16)')
    a('s_barrier')
    a.label('COL_round')
    stamp(a, 0)
    for q in range(4):
        a('ds_read_b128 %s, v%d offset:%d' % (vr(IN + 4 * q, 4), vI, q * 8192))
    for q in range(4):
        a('ds_read_b128 %s, v%d offset:%d' % (vr(IN + 16 + 4 * q, 4), vI1, q * 8192))
    a('s_waitcnt lgkmcnt(0)')
    a('s_barrier')
    fft_pair(a)
    stamp(a, 1)
    a('s_waitcnt vmcnt(8)')
    pointwise(a)
    stamp(a, 2)
    a('s_add_u32 s%d, s%d, 2' % (sK, sK))
    a('s_cmp_lg_u32 s%d, 0' % sRd)
    a('s_cbranch_scc1 COL_nw')
    wload()
    a.label('COL_nw')
    fft_pair(a)
    a('s_cmp_lg_u32 s%d, 2' % sK)
    a('s_cbranch_scc1 COL_nhalf')
    for i in range(64):
        a('v_mul_f32 v%d, 0.5, v%d' % (T1 + i, T1 + i))
    a.label('COL_nhalf')
    stamp(a, 3)
    for rho in range(2):
        for i in range(16):
            t = TT + (i & 7)
            a('v_cvt_pk_bf16_f32 v%d, v%d, v%d' % (t, T1 + 16 * rho + i, T2 + 16 * rho + i))
            a('ds_write_b32 v%d, v%d offset:%d' % (vSW, t, rho * 8192 + (8 * (i >> 2) + (i & 3)) * 256))
    a('s_waitcnt lgkmcnt(0)')
    a('s_waitcnt vmcnt(8)')
    a('s_barrier')
    stamp(a, 4)
    for it in range(8):
        for rho in range(2):
            a('ds_read_b64_tr_b16 %s, v%d offset:%d' % (vr(T1 + 4 * it + 2 * rho, 2), vRo if it & 1 else vRe, 256 * (it >> 1) + rho * 8192))
    for it in range(8):
        a('s_waitcnt lgkmcnt(%d)' % (14 - 2 * it))
        a('s_add_u32 s22, s24, %d' % (it * 65536))
        a('buffer_store_dwordx4 %s, v%d, s[28:31], s22 offen' % (vr(T1 + 4 * it, 4), vSt))
    stamp(a, 5)
    a('s_cmp_lg_u32 s%d, 0' % sRd)
    a('s_cbranch_scc1 COL_done')
    a('s_mov_b32 s%d, 1' % sRd)
    a('s_add_u32 s24, s24, 64')
    for v in (vI, vI1, vSW, vRe, vRo):
        a('v_add_u32 v%d, 0x10000, v%d' % (v, v))
    a('s_branch COL_round')
    a.label('COL_done')
    a('s_or_b32 s22, s%d, s%d' % (sC, sW))
    a('s_cmp_lg_u32 s22, 0')
    a('s_cbranch_scc1 COL_end')
    a('s_mov_b32 s%d, 512' % sK)
    a('v_lshlrev_b32 v%d, 5, v%d' % (vI, vL))
    a('s_mov_b32 s25, 0x%x' % ZN)
    a('s_add_u32 s26, s25, 4096')
    for p in range(2):
        for q in range(4):
            a('buffer_load_dwordx4 %s, v%d, s[28:31], s%d offen offset:%d' % (vr(IN + 16 * p + 4 * q, 4), vI, 25 + (q >> 1), (q & 1) * 2048 + p * 16))
    wload()
    a('s_waitcnt vmcnt(8)')
    fft_pair(a)
    a('s_waitcnt vmcnt(0)')
    pointwise(a)
    fft_pair(a)
    a('v_lshlrev_b32 v%d, 3, v%d' % (vI, vC))
    a('v_lshl_add_u32 v%d, v%d, 10, v%d' % (vI, vH, vI))
    a('s_mov_b32 s25, 0x%x' % YN)
    a('s_add_u32 s26, s25, 4096')
    for i in range(16):
        t = IN + 2 * i
        a('v_mul_f32 v%d, 0.5, v%d' % (t, T1 + i))
        a('v_mul_f32 v%d, 0.5, v%d' % (t + 1, T2 + i))
        a('buffer_store_dwordx2 %s, v%d, s[28:31], s%d offen offset:%d' % (vr(t, 2), vI, 25 + (i >> 3), (8 * ((i >> 2) & 1) + (i & 3)) * 256))
    a.label('COL_end')
    if DIAG[0]:
        a('s_waitcnt vmcnt(0)')
        stamp_out(a, 2, sW, 28, 6, v=1)
    a('s_endpgm')

def gen_col(a, name='col_kernel'):
    kernel_begin(a, name)
    a('s_cmp_lt_u32 s2, 32')
    a('s_cbranch_scc1 COL_go')
    a('s_endpgm')
    a.label('COL_go')
    col_body(a, 2)
    return dict(name=name, grid=32, block=512, lds=131072, vgpr=256, sgpr=100)
```

```python
import sys, math
from gen_common import *
import tables, hazard
from gen_col import cap, interleave
import gen_col
MF = 'v_mfma_f32_32x32x16_bf16'
NAME = 'parallel_sum__spectral_gfnet__mixer_token_mlp__prompt_kernel'

SLOT = 16384; RB = 65536
TABI = 65536; HIMG = TABI + 16384; ZIMG = HIMG + 16896; NIMG = ZIMG + 16640
CTL = 155648
WIMG = 131072; CTAB = 0; C2RS = 131072; BASEL = 147456; LDS_BYTES = 163840
EPOCH = FLAGS + 0x40
FA = FLAGS + 0x1000
FW = FLAGS + 0x4000
FG = FLAGS + 0x6000
FC = FLAGS + 0x8000
FN = FLAGS + 0x50000
FB = FLAGS + 0x9000
FH = FLAGS + 0xa000
FA2 = FLAGS + 0xc0000
FG2 = FLAGS + 0x80000
FP = FLAGS + 0x10000
POLL_MAX = 200000
sE, sW, WS = 3, 12, 28
sX, sI, sJ, sDt, sFt, sPhi = 54, 55, 56, 57, 58, 59
OPT = dict(P=8, D=2, pf_w1=0, pf_w2=0, nA=4, bsc=1, nowst=0, hzsc=1, aat=1, pf2hi=17, cyc='g1', lst='', noc2r=0, pfs=7, same=0, colst=0, cprio=1, c2r0=20, ant=0, xnt=3, apol='nt', ont=0, spf=0, spg=128, sp0=4, rpf=0, rpc=0, rp2=1, D1=6, bfirst=0, ppk=0, csep=1, wlate=0, fcw=1, fown=1, lazy=7, rf1=0, rf2=1, nA0=0, xe=1, zp=0, wp=0, yp=0, wdef=0, lpr=2, lpk=0, lpp=0, g2m=0, g2o=0, dl1=0, dl2=0, bd=2, tlb=0, tl2=12, pal=1, gpw=0, opw=0, pp=0, gp=0, hp=0, wp_=0, cph=0, cpe=0, cpr=0, cx=3, cpf=1, opf=1, op0=4, opl=0, ope=0, hs=0, hA=0, xt=-2, zd=3, ho=0, opr=0, tl=0, fpl=1, fal=1, fgl=1, ful=0, far=0, fgr=0, ptc=1, pt0=8, cpo=0)
SC = 'sc1'
POL = lambda k: ['sc1', 'sc1 nt', 'sc0 sc1', 'sc0 sc1 nt'][OPT[k]]
ZG = 32 * MB; YN = 29 * MB
ZS = lambda: 32768 + OPT['zp']
WS_ = lambda: 16384 + OPT['wp']
YS = lambda: 16384 + OPT['yp']

def st(a, i):
    if DIAG[0]: a('s_memrealtime s[%d:%d]' % (76 + 2 * i, 77 + 2 * i))
def stc(a, i):
    if DIAG[0]: a('s_memtime s[%d:%d]' % (76 + 2 * i, 77 + 2 * i))
def st_out(a):
    if not DIAG[0]: return
    a('s_waitcnt vmcnt(0)')
    st(a, 11)
    a('s_waitcnt lgkmcnt(0)')
    a('s_mov_b64 exec, 1')
    a('s_lshl_b32 s4, s2, 3')
    a('s_add_u32 s4, s4, s%d' % sW)
    a('s_lshl_b32 s4, s4, 6')
    a('s_add_u32 s4, s4, 0x%x' % STAMP)
    a('v_mov_b32 v1, 0')
    for i in range(12):
        a('v_mov_b32 v2, s%d' % (76 + 2 * i))
        a('buffer_store_dword v2, v1, s[28:31], s4 offen offset:%d' % (4 * i))

class VM:
    def __init__(self, a): self.a = a; self.q = []
    def op(self, tag, s):
        self.a(s); self.q.append(tag)
    def left(self, tag):
        if tag not in self.q: return None
        k = len(self.q) - 1 - self.q[::-1].index(tag)
        return len(self.q) - 1 - k
    def wait(self, tag):
        n = self.left(tag)
        if n is None: return
        assert n < 64
        self.a('s_waitcnt vmcnt(%d)' % n)
        self.q = self.q[len(self.q) - n:] if n else []
    def clear(self): self.q = []

def neq4(a, v, n):
    for i in range(n):
        a('v_xor_b32 v%d, s%d, v%d' % (v + i, sE, v + i))
    i = 1
    while i < n:
        if i + 1 < n:
            a('v_or3_b32 v%d, v%d, v%d, v%d' % (v, v, v + i, v + i + 1)); i += 2
        else:
            a('v_or_b32 v%d, v%d, v%d' % (v, v, v + i)); i += 1
    a('v_cmp_ne_u32 vcc, 0, v%d' % v)

def poll(a, lab, loads, v, n, scnt):
    a('s_mov_b32 s%d, %d' % (scnt, POLL_MAX))
    a.label(lab)
    for l in loads: a(l)
    a('s_sub_u32 s%d, s%d, 1' % (scnt, scnt))
    a('s_cbranch_scc1 %s_out' % lab)
    a('s_waitcnt vmcnt(0)')
    neq4(a, v, n)
    a('s_cbranch_vccnz %s' % lab)
    a.label(lab + '_out')

def post(a, soff, v0, mask='1', voff=None):
    if mask == '0xffffffff': a('s_mov_b32 exec_lo, -1'); a('s_mov_b32 exec_hi, 0')
    else: a('s_mov_b64 exec, %s' % mask)
    a('v_mov_b32 v%d, s%d' % (v0, sE))
    if voff is None:
        a('v_mov_b32 v%d, 0' % (v0 + 1)); voff = v0 + 1
    a('buffer_store_dword v%d, v%d, s[28:31], s%d offen sc1' % (v0, voff, soff))
    a('s_mov_b64 exec, -1')

def lds_spin(a, lab, vaddr, off, want, vt, scnt, cmp='ne'):
    a('s_mov_b32 s%d, %d' % (scnt, POLL_MAX * 16))
    a.label(lab)
    a('ds_read_b32 v%d, v%d offset:%d' % (vt, vaddr, off))
    a('s_sub_u32 s%d, s%d, 1' % (scnt, scnt))
    a('s_cbranch_scc1 %s_out' % lab)
    a('s_waitcnt lgkmcnt(0)')
    a('v_cmp_%s_u32 vcc, %d, v%d' % (cmp, want, vt))
    a('s_cbranch_vccnz %s' % lab)
    a.label(lab + '_out')

def order(T, P, D, phi, k0=0):
    keys = []
    DL = OPT['dl1' if T == 32 else 'dl2']
    if DL:
        n = (T - k0) // 8
        for s in range(T):
            if s < k0: keys.append((s - 100, 0, s))
            elif k0 + n * phi <= s < k0 + n * (phi + 1): keys.append((max(k0 + n * phi - DL, k0 - 1), 0, s))
            elif (s % 4) == (phi & 3): keys.append((max(s - OPT['bd'], k0 - 0.5), 0.5, s))
            else: keys.append((s, 1, s))
        keys.sort()
        return [k[2] for k in keys]
    for s in range(T):
        lead = (s % 4) == (phi & 3) if P > 1 else False
        d = D
        if P == 8 and (s % 8) == phi: d = OPT['D1']
        if s < k0: keys.append((s - 100, 0, s))
        else: keys.append((s - d if lead else s, 0 if lead else 1, s))
    keys.sort()
    return [k[2] for k in keys]

vL, vA, vG, vR4, vCC, vXW, vXR, vZW, vHR, vZR, vZS = range(1, 12)
TT, F, X, P_, CB, T_, A2 = 16, 32, 64, 80, 96, 160, 224
CFr, CFi, CTWC, CTWS, CTC, CTS = 160, 176, 192, 208, 224, 240

def rows(a):
    P = P_; T = T_
    B1c, B1s, B2, TWC, TWS = CB, CB + 8, CB + 16, CB + 32, CB + 48
    a('s_lshr_b32 s13, s2, 5')
    a('s_lshl_b32 s13, s13, 19')
    a('s_lshl_b32 s14, s%d, 17' % sW)
    a('s_add_u32 s13, s13, s14')
    a('s_and_b32 s14, s2, 31')
    a('s_lshl_b32 s14, s14, 12')
    a('s_add_u32 s13, s13, s14')
    a('s_waitcnt lgkmcnt(0)')
    srd_off(a, 24, 4, 5, 0, 4 * MB)
    for i in range(4):
        a('buffer_load_dwordx4 %s, v%d, s[24:27], s13 offen offset:%d%s' % (vr(X + 4 * i, 4), vA, i * 1024, ' nt' if OPT['xnt'] & 1 else ''))
    common_srd(a)
    a('s_mul_i32 s14, s%d, %d' % (sW, 2 * 2112))
    a('s_add_u32 s14, s14, %d' % HIMG)
    a('v_add_u32 v%d, s14, v%d' % (vXW, vA))
    a('v_lshrrev_b32 v%d, 1, v%d' % (TT, vG))
    a('v_lshl_add_u32 v%d, v%d, 3, v%d' % (TT, TT, vR4))
    a('v_lshlrev_b32 v%d, 6, v%d' % (TT, TT))
    a('v_and_b32 v%d, 1, v%d' % (TT + 1, vG))
    a('v_lshl_add_u32 v%d, v%d, 5, v%d' % (TT, TT + 1, TT))
    a('v_lshl_add_u32 v%d, v%d, 3, v%d' % (TT, vCC, TT))
    a('v_add_u32 v%d, s14, v%d' % (vXR, TT))
    a('s_mul_i32 s14, s%d, 4160' % sW)
    a('s_add_u32 s14, s14, %d' % ZIMG)
    a('v_lshlrev_b32 v%d, 3, v%d' % (TT, vL))
    a('v_add_u32 v%d, s14, v%d' % (vZW, TT))
    a('v_add_u32 v%d, %d, v%d' % (TT, TABI, vA))
    fin_addr(a)
    if OPT['hs']: a('s_waitcnt lgkmcnt(0)')
    a('s_barrier')
    for i in range(16):
        a('ds_read_b128 %s, v%d offset:%d' % (vr(CB + 4 * i, 4), TT, i * 1024))
    a('s_waitcnt vmcnt(2)')
    st(a, 1)
    S = TT + 2
    for p in range(2):
        if p: a('s_waitcnt vmcnt(0)')
        f = F + 16 * p
        unpack(a, f, X + 8 * p, 8)
        s_, q_ = S + 4 * p, S + 4 * p + 2
        a('v_pk_add_f32 %s, %s, %s' % (vr(s_, 2), vr(f, 2), vr(f + 2, 2)))
        a('v_pk_mul_f32 %s, %s, %s' % (vr(q_, 2), vr(f, 2), vr(f, 2)))
        a('v_pk_fma_f32 %s, %s, %s, %s' % (vr(q_, 2), vr(f + 2, 2), vr(f + 2, 2), vr(q_, 2)))
        for i in range(4, 16, 2):
            a('v_pk_add_f32 %s, %s, %s' % (vr(s_, 2), vr(s_, 2), vr(f + i, 2)))
            a('v_pk_fma_f32 %s, %s, %s, %s' % (vr(q_, 2), vr(f + i, 2), vr(f + i, 2), vr(q_, 2)))
    a0, a1 = S + 8, S + 9
    a('v_sub_f32 v%d, v%d, v%d' % (a0, S, S + 1))
    a('v_sub_f32 v%d, v%d, v%d' % (a1, S + 4, S + 5))
    a('v_add_f32 v%d, v%d, v%d' % (S, S, S + 1))
    a('v_add_f32 v%d, v%d, v%d' % (S + 4, S + 4, S + 5))
    a('v_add_f32 v%d, v%d, v%d' % (S + 2, S + 2, S + 3))
    a('v_add_f32 v%d, v%d, v%d' % (S + 6, S + 6, S + 7))
    for x, y in ((a0, a1), (S, S + 4), (S + 2, S + 6)):
        a('v_permlane32_swap_b32 v%d, v%d' % (x, y))
    for x, y in ((a0, a1), (S, S + 4), (S + 2, S + 6)):
        a('v_add_f32 v%d, v%d, v%d' % (x, x, y))
    a('v_permlane16_swap_b32 v%d, v%d' % (S, S + 2))
    a('v_add_f32_dpp v%d, v%d, v%d quad_perm:[1,0,3,2] row_mask:0xf bank_mask:0xf' % (a0, a0, a0))
    a('v_add_f32 v%d, v%d, v%d' % (S, S, S + 2))
    for pat0, pat1 in (('quad_perm:[2,3,0,1]', 'quad_perm:[1,0,3,2]'), ('row_half_mirror', 'quad_perm:[2,3,0,1]'), ('row_mirror', 'row_half_mirror'), ('row_bcast:15', 'row_mirror')):
        a('v_add_f32_dpp v%d, v%d, v%d %s row_mask:%s bank_mask:0xf' % (a0, a0, a0, pat0, '0xa' if 'bcast' in pat0 else '0xf'))
        a('v_add_f32_dpp v%d, v%d, v%d %s row_mask:0xf bank_mask:0xf' % (S, S, S, pat1))
    for i, ln in enumerate((0, 16, 32, 48)):
        a('v_readlane_b32 s%d, v%d, %d' % (16 + i, S, ln))
    a('v_readlane_b32 s20, v%d, 31' % a0)
    a('v_readlane_b32 s21, v%d, 63' % a0)
    K = TT + 2
    inv = fl(1.0 / 1024); eps = fl(1e-5)
    for p in range(2):
        k = K + 6 * p
        a('v_mov_b32 v%d, %s' % (k + 1, inv))
        a('v_mul_f32 v%d, s%d, v%d' % (k + 5, 16 + 2 * p, k + 1))
        a('v_mul_f32 v%d, s%d, v%d' % (k + 3, 17 + 2 * p, k + 1))
    for p in range(2):
        k = K + 6 * p
        a('v_fma_f32 v%d, -v%d, v%d, v%d' % (k + 3, k + 5, k + 5, k + 3))
    for p in range(2):
        k = K + 6 * p
        a('v_max_f32 v%d, 0, v%d' % (k + 3, k + 3))
    for p in range(2):
        k = K + 6 * p
        a('v_add_f32 v%d, %s, v%d' % (k, eps, k + 3))
    for p in range(2):
        k = K + 6 * p
        a('v_rsq_f32 v%d, v%d' % (k, k))
    for p in range(2):
        k = K + 6 * p
        a('v_mul_f32 v%d, v%d, v%d' % (k + 3, k + 3, k))
        a('v_mul_f32 v%d, -v%d, v%d' % (k + 2, k + 5, k))
    for p in range(2):
        k = K + 6 * p
        a('v_fmaak_f32 v%d, v%d, v%d, %s' % (k + 3, k + 3, k, eps))
        a('v_mul_f32 v%d, s%d, v%d' % (k + 1, 20 + p, k))
    for p in range(2):
        k = K + 6 * p
        a('v_rsq_f32 v%d, v%d' % (k + 4, k + 3))
    def xn(p):
        f = F + 16 * p; k = K + 6 * p
        for i in range(0, 16, 2):
            a('v_pk_fma_f32 %s, %s, %s, %s op_sel_hi:[1,0,0]' % (vr(f + i, 2), vr(f + i, 2), vr(k, 2), vr(k + 2, 2)))
        for i in range(8):
            a('v_cvt_pk_bf16_f32 v%d, v%d, v%d' % (P + 8 * p + i, f + 2 * i, f + 2 * i + 1))
        a('ds_write_b128 v%d, %s offset:%d' % (vXW, vr(P + 8 * p, 4), p * 2112))
        a('ds_write_b128 v%d, %s offset:%d' % (vXW, vr(P + 8 * p + 4, 4), p * 2112 + 1024))
        for q in range(2):
            for u in range(2):
                a('ds_read_b64_tr_b16 %s, v%d offset:%d' % (vr(X + 8 * p + 4 * q + 2 * u, 2), vXR, p * 2112 + q * 1024 + u * 256))
    xn(0); xn(1)
    def st1(p):
        o = []
        t = T + 32 * p
        for q in range(2):
            o.append('%s %s, %s, %s, %s' % (MF, vr(t, 16), vr(X + 8 * p + 4 * q, 4), vr(B1c + 4 * q, 4), '0' if q == 0 else vr(t, 16)))
            o.append('%s %s, %s, %s, %s' % (MF, vr(t + 16, 16), vr(X + 8 * p + 4 * q, 4), vr(B1s + 4 * q, 4), '0' if q == 0 else vr(t + 16, 16)))
        return o
    def hrow(p):
        def g(t):
            f = F + 16 * p; k = K + 6 * p
            for i in range(16):
                t('v_mul_f32 v%d, v%d, v%d' % (f + i, f + i, k + 4))
            for i in range(8):
                t('v_cvt_pk_bf16_f32 v%d, v%d, v%d' % (P + 8 * p + i, f + 2 * i, f + 2 * i + 1))
            t('ds_write_b128 v%d, %s offset:%d' % (vXW, vr(P + 8 * p, 4), p * 2112))
            t('ds_write_b128 v%d, %s offset:%d' % (vXW, vr(P + 8 * p + 4, 4), p * 2112 + 1024))
        return g
    a('s_waitcnt lgkmcnt(6)')
    interleave(a, st1(0), cap(hrow(0)))
    a('s_waitcnt lgkmcnt(2)')
    interleave(a, st1(1), cap(hrow(1)))
    if OPT['hs']:
        a('s_mov_b64 exec, 1')
        a('ds_add_u32 v%d, v%d offset:80' % (vCT, vCT + 1))
        a('s_mov_b64 exec, -1')
    a('v_cvt_pk_bf16_f32 v%d, v%d, v%d' % (K + 1, K + 1, K + 7))
    a('s_lshl_b32 s14, s%d, 1' % sW)
    a('s_add_u32 s14, s14, %d' % NIMG)
    a('v_mov_b32 v%d, s14' % K)
    a('v_mov_b32 v%d, 0' % (K + 2))
    a('s_mov_b64 exec, 1')
    a('ds_write_b16 v%d, v%d' % (K, K + 1))
    a('ds_write_b16_d16_hi v%d, v%d offset:16' % (K, K + 1))
    a('ds_write_b16 v%d, v%d offset:8' % (K, K + 2))
    a('ds_write_b16 v%d, v%d offset:24' % (K, K + 2))
    a('s_mov_b64 exec, -1')
    TP = F
    twiddle_pack(a, T, T + 16, TWC, TWS, A2, TP, pk=True)
    def st2(p):
        t = T + 32 * p
        return ['%s %s, %s, %s, %s' % (MF, vr(t, 16), vr(B2 + 4 * g, 4), vr(A2 + 16 * p + 4 * g, 4), '0' if g == 0 else vr(t, 16)) for g in range(4)]
    interleave(a, st2(0), cap(lambda t: twiddle_pack(t, T + 32, T + 48, TWC, TWS, A2 + 16, TP, groups=[0])))
    twiddle_pack(a, T + 32, T + 48, TWC, TWS, A2 + 16, TP, groups=[1, 2, 3], pk=True)
    def zout(p):
        def g_(t):
            for g in range(4):
                d = T + 32 * p + 4 * g
                o = P + 8 * p + 2 * g
                t('v_cvt_pk_bf16_f32 v%d, v%d, v%d' % (o, d, d + 1))
                t('v_cvt_pk_bf16_f32 v%d, v%d, v%d' % (o + 1, d + 2, d + 3))
                t('ds_write_b64 v%d, %s offset:%d' % (vZW, vr(o, 2), p * 2080 + (g >> 1) * 1024 + (g & 1) * 512))
        return g_
    interleave(a, st2(1), cap(zout(0)))
    zout(1)(a)

def common_srd(a):
    srd_off(a, WS, 10, 11, 0, WS_USED)
    a('s_add_u32 s10, s10, 0x%x' % EPOCH)
    a('s_addc_u32 s11, s11, 0')
    a('s_load_dword s%d, s[10:11], 0' % sE)

def w_addr(a, sV, v):
    a('s_and_b32 s15, s%d, 1' % sV)
    a('s_lshr_b32 s16, s%d, 1' % sV)
    a('s_and_b32 s17, s2, 3')
    a('s_bfe_u32 s18, s2, 0x30002')
    a('s_lshr_b32 s19, s2, 5')
    a('s_xor_b32 s19, s19, 7')
    a('s_lshl_b32 s20, s17, 1')
    a('s_add_u32 s20, s20, s16')
    a('s_lshl_b32 s20, s20, 2')
    a('s_lshl_b32 s21, s18, 1')
    a('s_add_u32 s21, s21, s15')
    a('s_lshl_b32 s21, s21, 6')
    a('s_add_u32 s21, s21, s20')
    a('s_mul_i32 s21, s21, 1026')
    a('s_lshl_b32 s22, s19, 7')
    a('s_add_u32 s22, s22, s21')
    a('s_add_u32 s23, s22, %d' % (1024 * 1026))
    a('v_bfe_u32 v%d, v%d, 3, 2' % (v, vL))
    a('v_lshrrev_b32 v%d, 5, v%d' % (v + 1, vL))
    a('v_lshl_add_u32 v%d, v%d, 5, v%d' % (v, v + 1, v))
    a('v_mul_u32_u24 v%d, 1026, v%d' % (v, v))
    a('v_and_b32 v%d, 7, v%d' % (v + 1, vL))
    a('v_lshl_add_u32 v%d, v%d, 4, v%d' % (v, v + 1, v))
    a('s_waitcnt lgkmcnt(0)')
    srd_off(a, 32, 6, 7, 0, 2048 * 1026)
    srd_off(a, 36, 8, 9, 0, 2048 * 1026)

vCT = 12
def fin_addr(a):
    t = TT + 2
    a('v_mul_u32_u24 v%d, 2112, v%d' % (vHR, vR4))
    a('v_lshl_add_u32 v%d, v%d, 5, v%d' % (vHR, vG, vHR))
    a('v_lshl_add_u32 v%d, v%d, 3, v%d' % (vHR, vCC, vHR))
    a('s_lshl_b32 s14, s%d, 8' % sW)
    a('s_add_u32 s14, s14, %d' % HIMG)
    a('v_add_u32 v%d, s14, v%d' % (vHR, vHR))
    a('v_mul_u32_u24 v%d, 4160, v%d' % (vZR, vR4))
    a('v_and_b32 v%d, 1, v%d' % (t, vCC))
    a('v_mul_u32_u24 v%d, 2080, v%d' % (t, t))
    a('v_lshl_add_u32 v%d, v%d, 4, v%d' % (vZR, vG, vZR))
    a('v_lshrrev_b32 v%d, 1, v%d' % (t + 1, vCC))
    a('v_lshl_add_u32 v%d, v%d, 3, v%d' % (t, t + 1, t))
    a('s_lshl_b32 s14, s%d, 7' % sW)
    a('s_add_u32 s14, s14, %d' % ZIMG)
    a('v_add3_u32 v%d, v%d, v%d, s14' % (vZR, vZR, t))
    a('s_bfe_u32 s14, s2, 0x30001')
    a('v_and_b32 v%d, 7, v%d' % (t, vL))
    a('v_xor_b32 v%d, s14, v%d' % (t, t))
    a('v_lshlrev_b32 v%d, 4, v%d' % (t, t))
    a('v_lshrrev_b32 v%d, 3, v%d' % (vZS, vL))
    a('v_mul_u32_u24 v%d, 0x%x, v%d' % (vZS, ZS(), vZS))
    a('v_add_u32 v%d, v%d, v%d' % (vZS, vZS, t))
    a('s_mul_i32 s14, s%d, 0x%x' % (sW, 16 * ZS()))
    a('s_lshl_b32 s48, s2, 7')
    a('s_add_u32 s48, s48, s14')
    a('s_lshl_b32 s14, s%d, 19' % sW)
    a('s_add_u32 s48, s48, 0x%x' % ZG)
    a('s_lshl_b32 s49, s2, 11')
    a('s_add_u32 s49, s49, s14')
    a('v_mov_b32 v%d, %d' % (vCT, CTL))
    a('v_mov_b32 v%d, 1' % (vCT + 1))

def col_tabs(a, t):
    a('v_add_u32 v%d, %d, v%d' % (t, TABI + 8192, vA))
    for i in range(8):
        a('ds_read_b128 %s, v%d offset:%d' % (vr(CFr + 4 * i, 4), vA, CTAB + i * 1024))
    for i in range(8):
        a('ds_read_b128 %s, v%d offset:%d' % (vr(CTWC + 4 * i, 4), t, i * 1024))
    for i in range(8):
        a('ds_read_b128 %s, v%d offset:%d' % (vr(CTC + 4 * i, 4), vA, CTAB + 8192 + i * 1024))

def arrive(a, pfx, vt, vct=12, off=4, base=FA, sh=10, st_=15, last=7):
    a('s_mov_b64 exec, 1')
    a('ds_add_rtn_u32 v%d, v%d, v%d offset:%d' % (vt, vct, vct + 1, off))
    a('s_waitcnt lgkmcnt(0)')
    a('v_cmp_ne_u32 vcc, %d, v%d' % (last, vt))
    a('s_mov_b64 exec, -1')
    a('s_cbranch_vccnz %s_na' % pfx)
    if base == FA and OPT['fal']:
        a('s_lshr_b32 s%d, s2, %d' % (st_, 4 - OPT['fal']))
        a('s_mul_i32 s%d, s%d, %d' % (st_, st_, 96 if OPT['fal'] == 1 else 112))
        a('s_lshl2_add_u32 s%d, s2, s%d' % (st_, st_))
        base, sh = FA2, 11 + OPT['fal']
    else: a('s_lshl_b32 s%d, s2, 2' % st_)
    a('s_add_u32 s%d, s%d, 0x%x' % (st_, st_, base))
    a('v_lshlrev_b32 v%d, %d, v%d' % (vt + 1, sh, vL))
    post(a, st_, vt, ['0xff', '0xffff', '0xffffffff'][OPT['far']] if base == FA2 else '0xff', vt + 1)
    a.label(pfx + '_na')

ZST = [None]
def fin(a):
    O = CB
    hs = OPT['hs']
    BT = 48 if hs else 128
    if hs: O = 16
    def zst(vz, vn):
        for k in range(4):
            if vz == vZS: a('s_waitcnt lgkmcnt(%d)' % (6 - 2 * k))
            a('buffer_store_dwordx4 %s, v%d, s[28:31], s48 offen %s' % (vr(O + 16 + 4 * k, 4), vz, POL('hp')))
            if k < 3: a('s_add_u32 s48, s48, 0x%x' % (8 * ZS() if k != 1 else 56 * ZS()))
    ZST[0] = zst
    def bias():
        srd_off(a, 24, 46, 47, 0, 7168)
        a('s_and_b32 s40, s%d, 1' % sW)
        a('s_lshl_b32 s45, s40, 7')
        a('s_lshl_b32 s44, s%d, 8' % sFt)
        a('s_add_u32 s45, s45, s44')
        a('v_lshlrev_b32 v%d, 3, v%d' % (TT + 8, vG))
        for i in range(4):
            a('buffer_load_dwordx2 %s, v%d, s[24:27], s45 offen offset:%d' % (vr(BT + 2 * i, 2), TT + 8, 32 * i))
    a('s_mov_b64 exec, 1')
    a('ds_add_u32 v%d, v%d' % (vCT, vCT + 1))
    a('s_mov_b64 exec, -1')
    if hs: bias()
    lds_spin(a, 'FIN_sp', vCT, 0, 4, TT, 14)
    a('s_add_u32 s%d, s%d, 1' % (sE, sE))
    st(a, 2)
    if not hs:
        for hf in range(2):
            for i in range(2):
                for u in range(2):
                    a('ds_read_b64_tr_b16 %s, v%d offset:%d' % (vr(O + 8 * hf + 4 * i + 2 * u, 2), vHR, u * 4 * 2112 + i * 128 + hf * 1024))
    for hf in range(2):
        for i in range(2):
            for rho in range(2):
                a('ds_read_b64_tr_b16 %s, v%d offset:%d' % (vr(O + 16 + 8 * hf + 4 * i + 2 * rho, 2), vZR, rho * 1024 + i * 64 + hf * 512))
    if not hs:
        a('s_add_u32 s50, s49, 0x200000')
        for k in range(4):
            a('s_waitcnt lgkmcnt(%d)' % (14 - 2 * k))
            a('buffer_store_dwordx4 %s, v%d, s[28:31], s%d offen offset:%d %s' % (vr(O + 4 * k, 4), vA, 49 + (k >> 1), (k & 1) * 1024, POL('hp')))
    if hs == 2:
        a('v_add_u32 v%d, %d, v%d' % (TT, NIMG, vA))
        a('ds_read_b128 v[56:59], v%d' % TT)
        a('v_mov_b32 v18, v%d' % vZS)
        a('v_mov_b32 v19, v%d' % vA)
        a('s_cmp_ge_u32 s2, 224')
        a('s_cbranch_scc1 FIN_c')
        a('s_waitcnt lgkmcnt(0)')
        a('s_mov_b64 exec, 1')
        a('ds_add_u32 v%d, v%d offset:88' % (vCT, vCT + 1))
        a('s_mov_b64 exec, -1')
        a('s_branch FIN_g1')
        a.label('FIN_c')
        a('s_waitcnt lgkmcnt(0)')
    zst(vZS, 0)
    a('s_cmp_lg_u32 s%d, 0' % sW)
    a('s_cbranch_scc1 FIN_nn')
    a('s_mov_b64 exec, 3')
    a('v_add_u32 v%d, %d, v%d' % (TT, NIMG, vA))
    a('ds_read_b128 %s, v%d' % (vr(X, 4), TT))
    a('s_lshl_b32 s16, s2, 5')
    a('s_add_u32 s16, s16, 0x%x' % ZN)
    a('s_waitcnt lgkmcnt(0)')
    a('buffer_store_dwordx4 %s, v%d, s[28:31], s16 offen %s' % (vr(X, 4), vA, SC))
    a('s_mov_b64 exec, -1')
    a.label('FIN_nn')
    if hs == 1:
        a('s_mov_b64 exec, 1')
        a('ds_add_u32 v%d, v%d offset:88' % (vCT, vCT + 1))
        a('s_mov_b64 exec, -1')
    if not hs: bias()
    a('s_cmp_lt_u32 s2, 224')
    a('s_cbranch_scc1 FIN_nt')
    lds_spin(a, 'FIN_ct', vCT, 12, 4, TT, 14)
    col_tabs(a, TT)
    a.label('FIN_nt')
    a('s_waitcnt vmcnt(%d) lgkmcnt(0)' % (0 if hs else 4))
    st(a, 3)
    arrive(a, 'FIN', TT)
    a.label('FIN_g1')

WV = 26
def wjob_addr(vm, sV):
    a = vm.a
    a('s_lshr_b32 s48, s18, 1')
    a('s_lshl_b32 s48, s48, 1')
    a('s_add_u32 s48, s48, s15')
    a('s_lshl_b32 s48, s48, 10')
    a('s_and_b32 s49, s18, 1')
    a('s_lshl_b32 s49, s49, 5')
    a('s_add_u32 s49, s49, s20')
    a('s_lshl_b32 s49, s49, 4')
    a('s_add_u32 s48, s48, s49')
    a('s_lshl_b32 s48, s48, 1')
    a('s_add_u32 s48, s48, 0x%x' % WT)
    a('s_mul_i32 s49, s%d, 6144' % sV)
    a('s_add_u32 s49, s49, %d' % WIMG)
    a('v_lshrrev_b32 v%d, 3, v%d' % (WV + 2, vL))
    a('v_mul_u32_u24 v%d, 192, v%d' % (WV + 2, WV + 2))
    a('v_lshl_add_u32 v%d, v%d, 4, v%d' % (WV + 2, WV + 1, WV + 2))
    a('v_add_u32 v%d, s49, v%d' % (WV + 2, WV + 2))
    a('v_mul_u32_u24 v%d, 192, v%d' % (WV + 3, vR4))
    a('v_lshl_add_u32 v%d, v%d, 5, v%d' % (WV + 3, vG, WV + 3))
    a('v_lshl_add_u32 v%d, v%d, 3, v%d' % (WV + 3, vCC, WV + 3))
    a('v_add_u32 v%d, s49, v%d' % (WV + 3, WV + 3))
    a('v_lshlrev_b32 v%d, 5, v%d' % (WV + 4, vL))
    a('v_add_u32 v%d, s49, v%d' % (WV + 4, WV + 4))
    a('v_lshl_add_u32 v%d, v%d, 2, v%d' % (WV + 5, vG, vCC))
    a('v_lshlrev_b32 v%d, 5, v%d' % (WV + 5, WV + 5))
    a('v_lshl_add_u32 v%d, v%d, 3, v%d' % (WV + 5, vR4, WV + 5))
    a('v_add_u32 v%d, s49, v%d' % (WV + 5, WV + 5))
    a('v_lshrrev_b32 v%d, 3, v%d' % (WV + 6, vL))
    a('v_mul_u32_u24 v%d, 0x%x, v%d' % (WV + 6, WS_(), WV + 6))
    a('v_and_b32 v%d, 7, v%d' % (WV + 7, vL))
    a('v_lshl_add_u32 v%d, v%d, 4, v%d' % (WV + 6, WV + 7, WV + 6))
    a('s_mov_b32 s53, s19')

def wjob(vm):
    a = vm.a
    X, P_ = 96, 112
    for src in range(4):
        a('ds_write_b128 v%d, %s offset:%d' % (WV + 2, vr(36 + 4 * src, 4), src * 8 * 192))
    a('s_add_u32 s50, s48, 0x%x' % (256 * WS_()))
    for src in range(4):
        for r2 in range(2):
            a('ds_read_b64_tr_b16 %s, v%d offset:%d' % (vr(X + 4 * src + 2 * r2, 2), WV + 3, (src * 8 + r2 * 4) * 192))
    a('s_waitcnt lgkmcnt(0)')
    for src in range(4):
        for r2 in range(2):
            a('ds_write_b64 v%d, %s offset:%d' % (WV + 4, vr(X + 4 * src + 2 * r2, 2), r2 * 2048 + src * 8))
    for t in range(4):
        for r2 in range(2):
            a('ds_read_b64_tr_b16 %s, v%d offset:%d' % (vr(P_ + 4 * t + 2 * r2, 2), WV + 5, r2 * 2048 + t * 512))
    a('s_mul_i32 s49, s53, 0x%x' % (32 * WS_()))
    a('s_add_u32 s48, s48, s49')
    for t in range(4):
        a('s_waitcnt lgkmcnt(%d)' % (6 - 2 * t))
        if not OPT['nowst']: vm.op('ws', 'buffer_store_dwordx4 %s, v%d, s[28:31], s48 offen %s' % (vr(P_ + 4 * t, 4), WV + 6, POL('wp_')))
        if t < 3: a('s_add_u32 s48, s48, 0x%x' % (8 * WS_()))

def gemm_setup(a, vAd):
    vA_ = vAd; vB = vAd + 4; bA = vAd + 5; bB = vAd + 9; vLn = vAd + 10; t0 = vAd + 11; t1 = vAd + 12
    a('v_mov_b32 v%d, v%d' % (vLn, vL))
    a('s_and_b32 s40, s%d, 1' % sW)
    a('s_lshr_b32 s41, s%d, 1' % sW)
    a('v_bfe_u32 v%d, v%d, 2, 2' % (t0, vLn))
    a('v_lshrrev_b32 v%d, 4, v%d' % (t1, vLn))
    a('v_lshl_add_u32 v%d, v%d, 3, v%d' % (bA, t1, t0))
    a('v_lshlrev_b32 v%d, 8, v%d' % (bA, bA))
    a('v_lshlrev_b32 v%d, 11, v%d' % (bB, t1))
    a('s_lshl_b32 s42, s40, 1')
    a('v_xor_b32 v%d, s42, v%d' % (t0, t0))
    a('v_lshl_add_u32 v%d, v%d, 6, v%d' % (bA, t0, bA))
    a('v_and_b32 v%d, 1, v%d' % (t0, t1))
    a('v_lshl_add_u32 v%d, v%d, 5, v%d' % (bA, t0, bA))
    a('v_and_b32 v%d, 3, v%d' % (t0, vLn))
    a('v_lshl_add_u32 v%d, v%d, 3, v%d' % (bA, t0, bA))
    for i in range(1, 4):
        a('v_xor_b32 v%d, %d, v%d' % (bA + i, 32 * i, bA))
    a('v_and_b32 v%d, 15, v%d' % (t0, vLn))
    a('v_lshl_add_u32 v%d, v%d, 4, v%d' % (bB, t0, bB))
    a('s_lshl_b32 s42, s41, 10')
    a('s_add_u32 s42, s42, %d' % RB)
    a('v_add_u32 v%d, s42, v%d' % (bB, bB))

def gemm_loop(a, pfx, mode, T, ACC, FR, vAd, s0, s1, hook=None, tail=None):
    vA_ = vAd; vB = vAd + 4; bA = vAd + 5
    for i in range(5):
        a('v_mov_b32 v%d, v%d' % (vA_ + i, bA + i))
    def rd(s, ks):
        f = FR + 32 * s
        A = lambda i, u: (('A', i), 'ds_read_b64_tr_b16 %s, v%d offset:%d' % (vr(f + 4 * i + 2 * u, 2), vA_ + i, ks * 8192 + u * 1024))
        B = lambda j: (('B', j), 'ds_read_b128 %s, v%d offset:%d' % (vr(f + 16 + 4 * j, 4), vB, ks * 8192 + j * 256))
        return [A(0, 0), A(0, 1), B(0), B(1), B(2), B(3), A(1, 0), A(1, 1), A(2, 0), A(2, 1), A(3, 0), A(3, 1)]
    def mf(s, i, j):
        f = FR + 32 * s
        A = vr(f + 4 * i, 4); B = vr(f + 16 + 4 * j, 4)
        c = vr(ACC + 16 * i + 4 * j, 4)
        if mode == 'g2': A, B = B, A
        a('v_mfma_f32_16x16x32_bf16 %s, %s, %s, %s' % (c, A, B, c))
    keys = [k for k, _ in rd(0, 0)]
    def group(s, r, start, hooks={}):
        done = 0; issued = 0
        for n in range(16):
            i, j = n >> 2, n & 3
            need = max(x for x, k in enumerate(keys) if k in (('A', i), ('B', j))) + 1
            if need > done:
                a('s_waitcnt lgkmcnt(%d)' % (12 - need + issued)); done = need
            mf(s, i, j)
            if n in hooks:
                if hooks[n](): done = 12
            if r is not None and n >= start and issued < 12:
                a(r[issued][1]); issued += 1
    a('s_mov_b32 s43, 0')
    a('s_mov_b32 s44, %d' % (T - (2 if tail else 1)))
    a('s_waitcnt lgkmcnt(0)')
    a('s_barrier')
    st(a, s0)
    if mode == OPT['cyc']: stc(a, 4)
    for x in rd(0, 0): a(x[1])
    if mode == 'g1' and OPT['hs'] == 2:
        ZST[0](18, 19)
        a('s_cmp_lg_u32 s%d, 0' % sW)
        a('s_cbranch_scc1 G1_nn')
        a('s_mov_b64 exec, 3')
        a('s_lshl_b32 s16, s2, 5')
        a('s_add_u32 s16, s16, 0x%x' % ZN)
        a('buffer_store_dwordx4 v[56:59], v19, s[28:31], s16 offen %s' % SC)
        a('s_mov_b64 exec, -1')
        a.label('G1_nn')
    a.raw('.p2align 6')
    a.label(pfx + '_loop')
    def adv():
        a('s_add_u32 s43, s43, %d' % SLOT)
        a('s_and_b32 s43, s43, 0x%x' % (4 * SLOT - 1))
        a('s_sub_u32 s44, s44, 1')
    def upd(lo, hi):
        def f():
            for i in range(lo, hi):
                a('v_add_u32 v%d, s43, v%d' % (vA_ + i, bA + i))
        return f
    h = {12: adv, 13: upd(0, 2), 14: upd(2, 4), 15: upd(4, 5)}
    if hook: h[4] = hook
    group(0, rd(1, 1), 0, h)
    def bar():
        if mode == 'g1' and OPT['hs'] == 2:
            a('s_cmp_lg_u32 s44, %d' % (T - 1 - OPT['zd']))
            a('s_cbranch_scc1 G1_np')
            a('s_waitcnt vmcnt(0)')
            st(a, 3)
            arrive(a, 'G1A', 30, 16)
            a.label('G1_np')
        if mode == 'g2' and OPT['lazy'] & 2:
            a('s_cmp_eq_u32 s24, 0')
            a('s_cbranch_scc1 G2_np')
            a('s_waitcnt vmcnt(0)')
            if OPT['ful'] & 2:
                a('s_mov_b64 exec, 0xff')
                a('v_lshlrev_b32 v28, 4, v%d' % (vAd + 10))
                for i in range(4): a('v_mov_b32 v%d, s%d' % (60 + i, sE))
                a('buffer_store_dwordx4 v[60:63], v28, s[28:31], s24 offen sc1')
                a('s_mov_b64 exec, -1')
            elif OPT['fgr']:
                a('v_lshlrev_b32 v31, 15, v%d' % (vAd + 10))
                post(a, 24, 30, '0xf', 31)
            else: post(a, 24, 30)
            a('s_mov_b32 s24, 0')
            a.label('G2_np')
        a('s_waitcnt lgkmcnt(0)'); a('s_barrier'); return True
    group(1, rd(0, 0), 1, {1: bar, 14: lambda: a('s_cmp_lg_u32 s44, 0')})
    a('s_cbranch_scc1 %s_loop' % pfx)
    if tail:
        q = [(0,) + k for k, _ in rd(0, 0)]
        def need(s, i, j):
            p = [x for x, k in enumerate(q) if k in ((s, 'A', i), (s, 'B', j))]
            if p:
                n = len(q) - 1 - max(p)
                a('s_waitcnt lgkmcnt(%d)' % min(n, 15))
                del q[:len(q) - min(n, 15)]
        def run(ms, rs, hooks={}):
            for n, (s, i, j) in enumerate(ms):
                need(s, i, j); mf(s, i, j)
                if n in hooks: hooks[n]()
                if rs:
                    k, l = rs.pop(0); a(l); q.append(k)
        row = lambda s, i: [(s, i, j) for j in range(4)]
        tag = lambda s, r: [((s,) + k, l) for k, l in r]
        run(row(0, 0) + row(0, 1) + row(0, 2) + row(1, 0), tag(1, rd(1, 1)), {12: adv, 13: upd(0, 2), 14: upd(2, 5)})
        a('s_waitcnt lgkmcnt(0)'); q.clear()
        a('s_barrier')
        r2, r3 = tag(2, rd(2, 0)), tag(3, rd(3, 1))
        rs = r2[:6] + r3[:6]
        for i in range(3): rs += r2[6 + 2 * i:8 + 2 * i] + r3[6 + 2 * i:8 + 2 * i]
        for n in range(3):
            k, l = rs.pop(0); a(l); q.append(k)
        run(row(1, 1) + row(1, 2) + row(0, 3) + row(1, 3) + row(2, 0) + row(3, 0), rs)
        assert not rs
        st(a, s1)
        a('s_waitcnt lgkmcnt(0)')
        for i in range(4):
            ms = row(2, i + 1) + row(3, i + 1) if i < 3 else []
            cb = tail[i]; sp = max(1, (len(cb) * 5 // 8) // 8)
            for n, l in enumerate(cb):
                if ms and n % sp == 0: mf(*ms.pop(0))
                a(l)
            assert not ms
        return
    group(0, rd(1, 1), 0)
    group(1, None, 0)
    st(a, s1)
    if mode == OPT['cyc']: stc(a, 5)

ACC, FR, vAd = 64, 128, 2
vLn = vAd + 10

def rpf_setup(a):
    k0 = OPT['rpf']
    a('s_load_dwordx2 s[4:5], s[0:1], %d' % KA_W1)
    a('s_load_dwordx2 s[6:7], s[0:1], %d' % KA_W2)
    a('v_lshrrev_b32 v29, 4, v%d' % vLn)
    a('v_bfe_u32 v30, v%d, 1, 3' % vLn)
    a('v_and_b32 v31, 1, v%d' % vLn)
    a('v_lshlrev_b32 v31, 7, v31')
    a('v_lshl_add_u32 v28, v29, 4, v30')
    a('v_lshl_add_u32 v29, v29, 6, v30')
    a('s_lshr_b32 s16, s%d, 1' % sDt)
    a('s_lshl_b32 s16, s16, 6')
    a('s_and_b32 s17, s%d, 1' % sDt)
    a('s_lshl_b32 s17, s17, 3')
    a('s_add_u32 s16, s16, s17')
    a('s_mul_i32 s16, s16, 7168')
    a('s_lshl_b32 s17, s%d, 8' % sFt)
    a('s_add_u32 s16, s16, s17')
    a('v_mul_u32_u24 v28, 7168, v28')
    a('v_add3_u32 v28, v28, v31, s16')
    g2_ids(a, 16, 17)
    a('s_mul_i32 s17, s17, %d' % (1792 * 4096))
    a('s_lshl_b32 s16, s16, 8')
    a('s_add_u32 s16, s16, s17')
    a('s_lshl_b32 s17, s%d, 15' % sDt)
    a('s_add_u32 s16, s16, s17')
    a('v_lshlrev_b32 v29, 12, v29')
    a('v_add3_u32 v29, v29, v31, s16')
    a('s_add_u32 s16, s%d, %d' % (sW, k0))
    a('s_mul_i32 s72, s16, %d' % (256 * 7168))
    a('s_and_b32 s16, s16, 3')
    a('s_lshl_b32 s73, s16, 20')
    a('s_lshl_b32 s16, s%d, 2' % sW)
    a('s_sub_u32 s74, %d, s16' % (31 - OPT['rpc']))
    a('s_and_b32 s74, s74, 15')
    a('s_sub_u32 s75, %d, s16' % (27 - OPT['rpc']))
    a('s_and_b32 s75, s75, 15')
    a('s_waitcnt lgkmcnt(0)')
    srd_off(a, 60, 4, 5, 0, 2048 * 7168)
    srd_off(a, 64, 6, 7, 0, 3584 * 4096)

def g1_compute(a):
    gemm_setup(a, vAd)
    if OPT['hs']:
        a('v_mov_b32 v16, %d' % CTL)
        a('v_mov_b32 v17, 1')
        a('s_mov_b32 s24, 1')
    a('s_waitcnt vmcnt(0)')
    BT = 48 if OPT['hs'] else 128
    for i in range(4):
        unpack(a, ACC + 16 * i, BT + 2 * i, 2)
        for r in range(12):
            a('v_mov_b32 v%d, v%d' % (ACC + 16 * i + 4 + r, ACC + 16 * i + (r & 3)))
    k0 = OPT['rpf']
    if k0:
        rpf_setup(a)
        a('s_add_u32 s16, s%d, 1' % sW)
        a('s_cmp_ge_u32 s16, %d' % k0)
        a('s_cbranch_scc1 G1_np0')
        a('s_mul_i32 s16, s16, %d' % (256 * 7168))
        a('buffer_load_dword v15, v28, s[60:63], s16 offen')
        a.label('G1_np0')
    def pf():
        a('s_and_b32 s16, s44, 15')
        a('s_cmp_lg_u32 s16, s74')
        a('s_cbranch_scc1 G1_nopf')
        a('s_cmp_le_u32 s44, %d' % (31 - 4 * (8 - k0)))
        a('s_cbranch_scc1 G1_pf2')
        a('buffer_load_dword v15, v28, s[60:63], s72 offen')
        a('s_add_u32 s72, s72, %d' % (1024 * 7168))
        a('s_branch G1_nopf')
        a.label('G1_pf2')
        if OPT['rp2']:
            a('buffer_load_dword v15, v29, s[64:67], s73 offen')
            a('s_add_u32 s73, s73, %d' % (1024 * 4096))
        a.label('G1_nopf')
    c1 = -2.0 * math.sqrt(2.0 / math.pi) * math.log2(math.e)
    c2 = c1 * 0.044715
    vS = 20; K1 = 22; K2 = 24; ONE = 26
    a('v_mov_b32 v%d, %s' % (K1, fl(c1))); a('v_mov_b32 v%d, %s' % (K1 + 1, fl(c1)))
    a('v_mov_b32 v%d, %s' % (K2, fl(c2))); a('v_mov_b32 v%d, %s' % (K2 + 1, fl(c2)))
    a('v_mov_b32 v%d, 1.0' % ONE); a('v_mov_b32 v%d, 1.0' % (ONE + 1))
    a('v_lshrrev_b32 v%d, 5, v%d' % (vS, vLn))
    a('v_lshlrev_b32 v%d, 11, v%d' % (vS, vS))
    a('v_and_b32 v%d, 31, v%d' % (vS + 1, vLn))
    a('v_lshl_add_u32 v%d, v%d, 4, v%d' % (vS, vS + 1, vS))
    a('s_mul_i32 s45, s%d, %d' % (sDt, 448 * 2048))
    a('s_lshl_b32 s46, s%d, 15' % sFt)
    a('s_add_u32 s45, s45, s46')
    a('s_lshl_b32 s46, s40, 14')
    a('s_add_u32 s45, s45, s46')
    a('s_lshl_b32 s46, s41, 10')
    a('s_add_u32 s45, s45, s46')
    a('s_add_u32 s45, s45, 0x%x' % GG)
    a('s_lshl_b32 s47, s40, 14')
    a('s_add_u32 s46, s46, s47')
    a('s_add_u32 s46, s46, %d' % RB)
    a('v_add_u32 v28, s46, v%d' % vS)
    def gpw():
        a('s_and_b32 s16, s44, 3')
        a('s_cbranch_scc1 G1_ngp')
        a('s_sub_u32 s16, s44, %d' % OPT['gpw'])
        a('s_cmp_gt_u32 s16, 12')
        a('s_cbranch_scc1 G1_ngp')
        a('s_lshl_b32 s16, s16, 10')
        a('s_add_u32 s16, s16, s45')
        for jj in range(2):
            a('buffer_store_dwordx4 v[24:27], v%d, s[28:31], s16 offen offset:%d %s' % (vS, jj * 512, SC))
        a.label('G1_ngp')
    def gelu(a, blk):
        u = ACC + 8 * blk
        octp, jj = 2 * (blk >> 1), blk & 1
        t = 32 + 16 * (blk & 1) if OPT['tl'] & 1 else 128 + 16 * (blk & 3)
        o = t + 8
        for p in range(0, 8, 2):
            a('v_pk_mul_f32 %s, %s, %s' % (vr(t + p, 2), vr(u + p, 2), vr(u + p, 2)))
        for p in range(0, 8, 2):
            a('v_pk_fma_f32 %s, %s, %s, %s' % (vr(t + p, 2), vr(t + p, 2), vr(K2, 2), vr(K1, 2)))
        for p in range(0, 8, 2):
            a('v_pk_mul_f32 %s, %s, %s' % (vr(t + p, 2), vr(t + p, 2), vr(u + p, 2)))
        for p in range(8):
            a('v_exp_f32 v%d, v%d' % (t + p, t + p))
        for p in range(0, 8, 2):
            a('v_pk_add_f32 %s, %s, %s' % (vr(t + p, 2), vr(t + p, 2), vr(ONE, 2)))
        for p in range(8):
            a('v_rcp_f32 v%d, v%d' % (t + p, t + p))
        for p in range(0, 8, 2):
            a('v_pk_mul_f32 %s, %s, %s' % (vr(t + p, 2), vr(t + p, 2), vr(u + p, 2)))
        for p in range(4):
            a('v_cvt_pk_bf16_f32 v%d, v%d, v%d' % (o + p, t + 2 * p, t + 2 * p + 1))
        a('v_permlane16_swap_b32 v%d, v%d' % (o, o + 2))
        a('v_permlane16_swap_b32 v%d, v%d' % (o + 1, o + 3))
        a('s_add_u32 s46, s45, %d' % (octp * 2048))
        a('buffer_store_dwordx4 %s, v%d, s[28:31], s46 offen offset:%d %s' % (vr(o, 4), vS, jj * 512, POL('gp')))
        if OPT['lazy'] & 2: a('ds_write_b128 v28, %s offset:%d' % (vr(o, 4), octp * 2048 + jj * 512))
    hk = pf if k0 else (gpw if OPT['gpw'] else None)
    if OPT['tl'] & 1:
        gemm_loop(a, 'G1', 'g1', 32, ACC, FR, vAd, 6, 7, hk, [cap(lambda t: (gelu(t, 2 * i), gelu(t, 2 * i + 1))) for i in range(4)])
    else:
        gemm_loop(a, 'G1', 'g1', 32, ACC, FR, vAd, 6, 7, hk)
        for blk in range(8): gelu(a, blk)
    a('s_lshr_b32 s13, s%d, 2' % sX)
    a('s_lshl_b32 s24, s%d, 1' % sDt)
    a('s_add_u32 s24, s24, s13')
    a('s_lshl_b32 s24, s24, 4')
    a('s_mul_i32 s13, s13, 14')
    a('s_sub_u32 s13, s%d, s13' % sFt)
    a('s_add_u32 s24, s24, s13')
    a('s_lshl_b32 s24, s24, %d' % (5 if OPT['fgl'] == 1 else 2))
    a('s_add_u32 s24, s24, s%d' % sW)
    a('s_lshl_b32 s24, s24, %d' % (7 if OPT['fgl'] == 2 else 2))
    a('s_add_u32 s24, s24, 0x%x' % (FG2 if OPT['fgl'] else FG))

def g2_ids(a, sSt, sKh):
    a('s_lshr_b32 s%d, s%d, 2' % (sKh, sX))
    a('s_bfe_u32 s%d, s%d, 0x10001' % (sSt, sX))
    a('s_lshl_b32 s%d, s%d, 3' % (sSt, sSt))
    if OPT['g2m']:
        a('s_add_u32 s15, s%d, s%d' % (sI, sDt))
        a('s_and_b32 s15, s15, 7')
        a('s_add_u32 s%d, s%d, s15' % (sSt, sSt))
    else: a('s_add_u32 s%d, s%d, s%d' % (sSt, sSt, sI))

def g2_compute(a):
    sSt, sKh = 13, 14
    vO, vW, vRd, vZ = 18, 20, 21, 22
    if not OPT['colst']: st(a, 8)
    if not OPT['lazy'] & 2:
        a('s_waitcnt vmcnt(0)')
        post(a, 24, 24)
    a.label('G2_R2')
    gemm_setup(a, vAd)
    if OPT['rpf']:
        a('s_cmp_lt_u32 s2, 224')
        a('s_cbranch_scc1 G2_npf')
        rpf_setup(a)
        a('s_lshl_b32 s73, s%d, 20' % sW)
        if OPT['rp2']: a('buffer_load_dword v15, v29, s[64:67], s73 offen')
        a('s_add_u32 s73, s73, %d' % (1024 * 4096))
        a.label('G2_npf')
    g2_ids(a, sSt, sKh)
    a('s_lshl_b32 s15, s%d, 1' % sSt)
    a('s_add_u32 s15, s15, s40')
    a('s_lshl_b32 s16, s15, 17')
    a('s_lshl_b32 s17, s%d, 6' % sSt)
    if OPT['pal']: a('s_mul_i32 s15, s%d, 0x%x' % (sKh, ZG - WT))
    else: a('s_lshl_b32 s15, s%d, 22' % sKh)
    a('s_add_u32 s16, s16, s15')
    a('s_lshl_b32 s15, s%d, 1' % sDt)
    a('s_add_u32 s15, s15, s41')
    a('s_lshl_b32 s18, s15, 7')
    a('s_add_u32 s16, s16, s18')
    a('s_add_u32 s16, s16, 0x%x' % (WT if OPT['pal'] else PART))
    a('s_lshl_b32 s15, s%d, 1' % sDt)
    a('s_add_u32 s15, s15, s%d' % sKh)
    a('s_lshl_b32 s15, s15, 2')
    a('s_add_u32 s17, s17, s15')
    if OPT['fpl']: a('s_lshl_b32 s17, s17, 5')
    if OPT['fpl'] == 2:
        a('s_and_b32 s15, s17, 0xfff')
        a('s_lshr_b32 s17, s17, 12')
        a('s_lshl_b32 s17, s17, 17')
        a('s_add_u32 s17, s17, s15')
    a('s_add_u32 s17, s17, 0x%x' % (PART if OPT['fpl'] == 2 else FP))
    a('v_mov_b32 v16, %d' % CTL)
    a('v_mov_b32 v17, 1')
    a('v_lshlrev_b32 v19, %d, v%d' % ([10, 15, 12][OPT['fpl']], vLn))
    a('v_and_b32 v%d, 15, v%d' % (vZ, vLn))
    a('v_lshrrev_b32 v%d, 3, v%d' % (vO, vLn))
    a('v_and_b32 v%d, 7, v%d' % (vRd, vLn))
    a('v_xor_b32 v%d, v%d, v%d' % (vW, vRd, vO))
    a('v_lshlrev_b32 v%d, 4, v%d' % (vRd, vRd))
    a('v_lshlrev_b32 v%d, 4, v%d' % (vW, vW))
    a('s_lshl_b32 s15, s%d, 13' % sW)
    a('v_lshl_add_u32 v%d, v%d, 7, v%d' % (vW, vO, vW))
    a('v_lshl_add_u32 v%d, v%d, 11, v%d' % (vO, vO, vRd))
    a('v_add_u32 v%d, s15, v%d' % (vRd, vW))
    a('v_lshrrev_b32 v%d, 5, v%d' % (vW, vLn))
    a('v_xor_b32 v%d, v%d, v%d' % (vW, vW, vZ))
    a('v_and_b32 v%d, 7, v%d' % (vW, vW))
    a('v_lshlrev_b32 v%d, 4, v%d' % (vW, vW))
    a('v_lshl_add_u32 v%d, v%d, 7, v%d' % (vW, vZ, vW))
    a('v_bfe_u32 v%d, v%d, 4, 1' % (vZ, vLn))
    a('v_lshl_add_u32 v%d, v%d, 3, v%d' % (vW, vZ, vW))
    a('v_add_u32 v%d, s15, v%d' % (vW, vW))
    for j in range(1, 4):
        a('v_xor_b32 v%d, %d, v%d' % (24 + j, 32 * j, vW))
    for r in range(64):
        a('v_mov_b32 v%d, 0' % (ACC + r))
    def pf():
        a('s_and_b32 s42, s44, 15')
        a('s_cmp_lg_u32 s42, s75')
        a('s_cbranch_scc1 G2_nopf')
        a('s_cmp_ge_u32 s73, %d' % (7 << 20))
        a('s_cbranch_scc1 G2_nopf')
        a('buffer_load_dword v15, v29, s[64:67], s73 offen')
        a('s_add_u32 s73, s73, %d' % (1024 * 4096))
        a.label('G2_nopf')
    if OPT['tl'] & 2:
        R = 32
        def part(a, i):
            for j in range(4):
                u = ACC + 16 * i + 4 * j
                a('v_cvt_pk_bf16_f32 v%d, v%d, v%d' % (u, u, u + 1))
                a('v_cvt_pk_bf16_f32 v%d, v%d, v%d' % (u + 1, u + 2, u + 3))
                a('ds_write_b64 v%d, %s offset:%d' % (24 + j if j else vW, vr(u, 2), 2048 * i))
            for h in range(2):
                a('ds_read_b128 %s, v%d offset:%d' % (vr(R + 8 * i + 4 * h, 4), vRd, 2048 * i + 1024 * h))
            for h in range(2):
                if i:
                    a('s_waitcnt lgkmcnt(%d)' % (7 - h))
                    a('buffer_store_dwordx4 %s, v%d, s[28:31], s16 offen %s' % (vr(R + 8 * (i - 1) + 4 * h, 4), vO, POL('pp')))
                    a('s_add_u32 s16, s16, 16384')
            if i == 3:
                for h in range(2):
                    a('s_waitcnt lgkmcnt(%d)' % (1 - h))
                    a('buffer_store_dwordx4 %s, v%d, s[28:31], s16 offen %s' % (vr(R + 24 + 4 * h, 4), vO, POL('pp')))
                    if not h: a('s_add_u32 s16, s16, 16384')
        gemm_loop(a, 'G2', 'g2', 28, ACC, FR, vAd, 9, 10, None, [cap(lambda t: part(t, i)) for i in range(4)])
    else:
        gemm_loop(a, 'G2', 'g2', 28, ACC, FR, vAd, *((11, 11) if OPT['colst'] else (9, 10)), pf if OPT['rpf'] and OPT['rp2'] else None)
        R = 128
        for i in range(4):
            for j in range(4):
                u = ACC + 16 * i + 4 * j
                a('v_cvt_pk_bf16_f32 v%d, v%d, v%d' % (u, u, u + 1))
                a('v_cvt_pk_bf16_f32 v%d, v%d, v%d' % (u + 1, u + 2, u + 3))
                a('ds_write_b64 v%d, %s offset:%d' % (24 + j if j else vW, vr(u, 2), 2048 * i))
            for h in range(2):
                a('ds_read_b128 %s, v%d offset:%d' % (vr(R + 8 * i + 4 * h, 4), vRd, 2048 * i + 1024 * h))
            if i:
                for h in range(2):
                    a('s_waitcnt lgkmcnt(%d)' % (7 - h))
                    a('buffer_store_dwordx4 %s, v%d, s[28:31], s16 offen %s' % (vr(R + 8 * (i - 1) + 4 * h, 4), vO, POL('pp')))
                    a('s_add_u32 s16, s16, 16384')
        for h in range(2):
            a('s_waitcnt lgkmcnt(%d)' % (1 - h))
            a('buffer_store_dwordx4 %s, v%d, s[28:31], s16 offen %s' % (vr(R + 24 + 4 * h, 4), vO, POL('pp')))
            if not h: a('s_add_u32 s16, s16, 16384')
    a('s_waitcnt vmcnt(0)')
    if OPT['lst'] == 'x': st(a, 1)
    a('s_mov_b64 exec, 1')
    a('ds_add_rtn_u32 v24, v16, v17 offset:40')
    a('s_waitcnt lgkmcnt(0)')
    a('v_cmp_ne_u32 vcc, 3, v24')
    a('s_cbranch_vccnz G2_end')
    if OPT['ful'] & 1:
        a('s_mov_b64 exec, -1')
        a('v_lshrrev_b32 v19, 3, v%d' % vLn)
        a('v_lshlrev_b32 v19, 15, v19')
        a('v_and_b32 v28, 7, v%d' % vLn)
        a('v_lshl_add_u32 v19, v28, 4, v19')
        for i in range(4): a('v_mov_b32 v%d, s%d' % (24 + i, sE))
        a('buffer_store_dwordx4 v[24:27], v19, s[28:31], s17 offen sc1')
    else: post(a, 17, 24, '0xffffffff' if OPT['fpl'] == 2 else '0xff', 19)
    a.label('G2_end')
    st_out(a)
    a('s_endpgm')

LA2, LB2, LB1, LA1 = 240, 244, 245, 246
TA, TB, TB2 = 60, 68, 46
DUM = 22

def ld_addr(a, mode, sA, sB, vAo, vBo):
    pitch = 7168 if mode == 'g1' else 4096
    vT, vU = 24, 25
    a('v_lshrrev_b32 v%d, 4, v%d' % (vT, vL))
    a('v_lshlrev_b32 v%d, 2, v%d' % (vU, vT))
    a('v_xor_b32 v%d, v%d, v%d' % (vU, vU, vL))
    a('v_and_b32 v%d, 15, v%d' % (vU, vU))
    a('v_lshlrev_b32 v%d, 4, v%d' % (vU, vU))
    a('s_lshr_b32 s40, s42, 12')
    if mode == 'g1':
        a('v_and_b32 v%d, 1, v%d' % (vAo, vT))
        a('v_lshrrev_b32 v%d, 1, v%d' % (vT, vT))
        a('v_lshl_add_u32 v%d, v%d, 6, v%d' % (vT, vT, vAo))
        a('s_mul_i32 s41, s40, %d' % (4 * pitch))
        rowi = [0, 128, 2, 130]
    else:
        a('s_mul_i32 s41, s40, %d' % (16 * pitch))
        rowi = [0, 4, 8, 12]
    a('s_add_u32 s41, s41, s%d' % sA)
    a('v_mul_u32_u24 v%d, %d, v%d' % (vT, pitch, vT))
    a('v_add3_u32 v%d, v%d, v%d, s41' % (vAo, vT, vU))
    a('v_xor_b32 v%d, 32, v%d' % (vU, vU))
    a('v_add3_u32 v%d, v%d, v%d, s41' % (vU, vT, vU))
    for i in range(1, 4):
        a('v_add_u32 v%d, 0x%x, v%d' % (vAo + i, rowi[i] * pitch - i * 1024, vU if i >= 2 else vAo))
    a('s_add_u32 s41, s42, s%d' % sB)
    a('v_lshlrev_b32 v%d, 4, v%d' % (vBo, vL))
    a('v_add_u32 v%d, s41, v%d' % (vBo, vBo))

def ld_tables(a, pfx, mode, T):
    P, D = OPT['P'], OPT['D']
    fixed = mode == 'g2' and OPT['g2o']
    for phi in range(1 if fixed else P):
        o = order(T, P, D, phi, 4 if mode == 'g2' and OPT['lazy'] & 2 else 0)
        if fixed:
            o = {1: [0, 1, 14, 15] + list(range(2, 14)) + list(range(16, 28)), 2: list(range(28)),
                 3: [0, 1, 2, 3, 14, 15] + list(range(4, 14)) + list(range(16, 28)),
                 4: [0, 1, 14, 15] + list(range(26, 15, -2)) + [], }[OPT['g2o']]
            if OPT['g2o'] == 4:
                o = [0, 1, 14, 15]
                for f in (13, 12, 11, 10, 9, 8, 6, 5, 4, 3, 2, 1): o += [2 * f, 2 * f + 1]
            assert sorted(o) == list(range(28))
        else:
            a('s_cmp_lg_u32 s%d, %d' % (sPhi, phi))
            a('s_cbranch_scc1 %s_phi%d' % (pfx, phi))
        for r in range((T + 3) // 4):
            v = 0; u = 0
            for b in range(4):
                if r * 4 + b < T:
                    t = o[r * 4 + b]
                    v |= t << (8 * b)
                    u |= (16 * (t >> 2) + (t & 3)) << (8 * b)
            a('s_mov_b32 s%d, 0x%x' % ((TB if mode == 'g1' else TB2) + r, v))
            if mode == 'g1': a('s_mov_b32 s%d, 0x%x' % (TA + r, u))
        if OPT['ant'] & 12: a('s_mov_b32 s%d, 0x%x' % (100 if mode == 'g1' else 101, sum(1 << k for k, t in enumerate(o) if t % P == phi)))
        a.label('%s_phi%d' % (pfx, phi))
    if mode == 'g2' and OPT['lazy'] & 2:
        a.comment('start with the tile this workgroup produced itself: stage = (position + 2 own) mod 28')
        a('s_bfe_u32 s17, s%d, 0x10001' % sX)
        a('s_mul_i32 s17, s17, 7')
        a('s_add_u32 s17, s17, s%d' % sI)
        a('s_mul_i32 s17, s17, 0x02020202')
        for r in range(7):
            a('s_add_u32 s%d, s%d, s17' % (TB2 + r, TB2 + r))
            a('s_add_u32 s20, s%d, 0x64646464' % (TB2 + r))
            a('s_and_b32 s20, s20, 0x80808080')
            a('s_lshr_b32 s20, s20, 7')
            a('s_mul_i32 s20, s20, 28')
            a('s_sub_u32 s%d, s%d, s20' % (TB2 + r, TB2 + r))

UID = [0]
def issueA(vm, mode, t):
    a = vm.a
    sel = (8 << 16) | (8 * (t % 4))
    if mode == 'g1':
        a('s_bfe_u32 s43, s%d, 0x%x' % (TA + t // 4, sel))
        a('s_mul_i32 s43, s43, %d' % (16 * 7168))
    else:
        a('s_bfe_u32 s43, s%d, 0x%x' % (TB2 + t // 4, sel))
        a('s_lshl_b32 s43, s43, 18')
    a('s_add_u32 m0, s42, %d' % ((t % 4) * SLOT))
    ld = lambda i, pol: 'buffer_load_dwordx4 v%d, %s, s43 offen offset:%d %s lds' % ((LA1 if mode == 'g1' else LA2) + i, sr(24 if mode == 'g1' else 32, 4), i * 1024, pol)
    pol = OPT['apol'].replace('+', ' ')
    if OPT['ant'] & (4 if mode == 'g1' else 8):
        UID[0] += 1; u = UID[0]
        a('s_bitcmp1_b32 s%d, %d' % (100 if mode == 'g1' else 101, t))
        a('s_cbranch_scc1 LD%d_n' % u)
        for i in range(4): a(ld(i, ''))
        a('s_branch LD%d_j' % u)
        a.label('LD%d_n' % u)
        for i in range(4): vm.op((mode, t), ld(i, pol))
        a.label('LD%d_j' % u)
        return
    for i in range(4):
        vm.op((mode, t), ld(i, pol if OPT['ant'] & (1 if mode == 'g1' else 2) or (t < 4 and OPT['ant'] & (16 if mode == 'g1' else 32)) else ''))
def issueB(vm, mode, t):
    a = vm.a
    sel = (8 << 16) | (8 * (t % 4))
    a('s_bfe_u32 s44, s%d, 0x%x' % ((TB if mode == 'g1' else TB2) + t // 4, sel))
    a('s_lshl_b32 s44, s44, 14')
    a('s_add_u32 m0, s42, %d' % (RB + (t % 4) * SLOT))
    for i in range(4):
        vm.op((mode, t), 'buffer_load_dwordx4 v%d, s[28:31], s44 offen offset:%d %s lds' % (LB1 if mode == 'g1' else LB2, i * 1024, 'sc1' if OPT['bsc'] else ''))

NR = 22
def flag_load(mode):
    return 'buffer_load_dwordx4 v[24:27], v%d, s[28:31], s53 offen sc1' % (21 if OPT['fal'] else vA) if mode == 'g1' else 'buffer_load_dword v24, v23, s[28:31], s53 offen sc1'
def nr_init(a):
    a('s_cmp_eq_u32 s%d, 4' % sW)
    a('s_cselect_b64 s[%d:%d], -1, 0' % (NR, NR + 1))
def refresh(vm, mode):
    a = vm.a
    vm.wait('fa')
    neq4(a, 24, 4 if mode == 'g1' else 1)
    a('s_and_b64 s[%d:%d], s[%d:%d], vcc' % (NR, NR + 1, NR, NR + 1))
def guard(a, mode, t, sfx=''):
    u = 'GD%s_%d%s' % (mode, t, sfx)
    a('s_cmp_eq_u64 s[%d:%d], 0' % (NR, NR + 1))
    a('s_cbranch_scc1 %s_ok' % u)
    a('s_bfe_u32 s44, s%d, 0x%x' % ((TB if mode == 'g1' else TB2) + t // 4, (8 << 16) | (8 * (t % 4))))
    if mode == 'g2': a('s_and_b32 s44, s44, 0xfe')
    a('s_lshl_b32 s44, s44, 1')
    a('s_mov_b32 s15, %d' % POLL_MAX)
    a.label(u)
    a('s_lshr_b64 s[16:17], s[%d:%d], s44' % (NR, NR + 1))
    a('s_and_b32 s16, s16, %d' % (3 if mode == 'g1' else 15))
    a('s_cbranch_scc0 %s_ok' % u)
    a(flag_load(mode))
    a('s_waitcnt vmcnt(0)')
    neq4(a, 24, 4 if mode == 'g1' else 1)
    a('s_sub_u32 s15, s15, 1')
    a('s_cselect_b64 s[%d:%d], 0, vcc' % (NR, NR + 1))
    a('s_branch %s' % u)
    a.label(u + '_ok')
def lgate(a, mode, t, off, val, sfx=''):
    u = 'LG%s_%d%s' % (mode, t, sfx)
    a('s_cmp_lg_u32 s%d, 4' % sW)
    a('s_cbranch_scc1 %s_a' % u)
    guard(a, mode, t, sfx)
    a('v_mov_b32 v24, %d' % val)
    a('ds_write_b32 v%d, v24 offset:%d' % (vCT, off))
    a('s_branch %s_b' % u)
    a.label(u + '_a')
    lds_spin(a, u + '_s', vCT, off, val, 24, 16, 'gt')
    a.label(u + '_b')

def spf(a, mode, st_):
    if not OPT['spf'] or st_ >= (32 if mode == 'g1' else 28): return
    pitch = 7168 if mode == 'g1' else 4096
    row = 256 * (st_ >> 2) + 16 * (st_ & 3) if mode == 'g1' else 64 * st_
    a('s_mov_b32 s100, 0x%x' % (row * pitch))
    for r in range(2):
        for o in range(0, 256, OPT['spg']):
            a('s_load_dword s101, s[%d:%d], s100 offset:%d' % ((8, 9, r * pitch + o) if mode == 'g1' else (10, 11, r * pitch + o)))

def g2_lsetup(a, pfx):
    g2_ids(a, 13, 14)
    srd_off(a, 32, 6, 7, 0, 3584 * 4096)
    a('s_mul_i32 s20, s14, %d' % (1792 * 4096))
    a('s_lshl_b32 s17, s13, 8')
    a('s_add_u32 s20, s20, s17')
    if OPT['spf']:
        a('s_lshl_b32 s17, s%d, 15' % sDt)
        a('s_lshl_b32 s21, s42, 1')
        a('s_add_u32 s17, s17, s21')
        a('s_add_u32 s17, s17, s20')
        a('s_add_u32 s10, s6, s17')
        a('s_addc_u32 s11, s7, 0')
    a('s_mul_i32 s21, s%d, %d' % (sDt, 448 * 2048))
    a('s_mul_i32 s17, s14, %d' % (224 * 2048))
    a('s_add_u32 s21, s21, s17')
    a('s_add_u32 s21, s21, 0x%x' % GG)
    if OPT['same'] & 1: a('s_mov_b32 s20, 0')
    if OPT['same'] & 2: a('s_mov_b32 s21, 0x%x' % GG)
    ld_addr(a, 'g2', 20, 21, LA2, LB2)
    ld_tables(a, pfx, 'g2', 28)

def prefetch(vm, srd, sOff, n, v):
    for i in range(n):
        vm.op('pf', 'buffer_load_dword v%d, v%d, %s, s%d offen' % (DUM, v, sr(srd, 4), sOff))
        if i < n - 1: vm.a('s_add_u32 s%d, s%d, 4096' % (sOff, sOff))

def x_early(vm, tag, lds=False):
    a = vm.a
    srd_off(a, 36, 4, 5, 0, 4 * MB)
    a('s_and_b32 s18, s2, 31')
    a('s_lshr_b32 s19, s2, 5')
    a('s_lshl_b32 s19, s19, 7')
    a('s_add_u32 s18, s18, s19')
    a('s_lshl_b32 s18, s18, 12')
    a('s_lshl_b32 s19, s42, 5')
    a('s_add_u32 s18, s18, s19')
    a('v_lshlrev_b32 v25, 4, v%d' % vL)
    if lds:
        a('s_add_u32 m0, s42, %d' % C2RS)
        for i in range(4):
            vm.op(tag, 'buffer_load_dwordx4 v25, s[36:39], s18 offen offset:%d nt lds' % (i * 1024))
        return
    for i in range(4):
        vm.op(tag, 'buffer_load_dwordx4 %s, v25, s[36:39], s18 offen offset:%d nt' % (vr(72 + 4 * i, 4), i * 1024))

def xtab(vm, x=True, c=True):
    a = vm.a
    if x: x_early(vm, 'x')
    if c:
        tables.tab_srd(a, 36, 'x')
        a('s_mov_b32 s18, %d' % tables.OFF['FR'])
        a('s_mov_b32 s19, %d' % tables.OFF['FI'])
        for i in range(6):
            vm.op('c', 'buffer_load_dwordx4 %s, v%d, s[36:39], s%d offen offset:%d' % (vr(CFr + 4 * i, 4), vA, 18 + (i >> 2), (i & 3) * 1024))

def l_phase_a(a):
    vm = VM(a)
    nA = OPT['nA']
    if OPT['lpr'] and OPT['lpp'] == 0: a('s_setprio %d' % OPT['lpr'])
    tables.tab_srd(a, 40, 'l')
    a('s_and_b32 s13, s%d, 3' % sW)
    a('s_lshl_b32 s14, s13, 12')
    a('s_add_u32 m0, s14, %d' % TABI)
    for i in range(4):
        vm.op('tab', 'buffer_load_dwordx4 v%d, s[40:43], s14 offen offset:%d lds' % (vA, i * 1024))
    w_addr(a, 13, WV)
    for src in range(4):
        vm.op('w', 'buffer_load_dwordx4 %s, v%d, %s, s%d offen%s' % (vr(36 + 4 * src, 4), WV, sr(32 + 4 * (src & 1), 4), 22 + (src >> 1), ' nt' if OPT['xnt'] & 2 else ''))
    if OPT['lpr'] and OPT['lpp'] == 1: a('s_setprio %d' % OPT['lpr'])
    if OPT['lst'] == 'a': st(a, 10)
    a('v_mov_b32 v%d, %d' % (vCT, CTL))
    a('v_mov_b32 v%d, 1' % (vCT + 1))
    a('v_mov_b32 v14, 0')
    a('v_mov_b32 v15, 0')
    for o in range(0, 96, 8): a('ds_write_b64 v%d, v[14:15] offset:%d' % (vCT, o))
    common_srd(a)
    a('s_load_dwordx2 s[6:7], s[0:1], %d' % KA_W2)
    a('s_load_dwordx2 s[8:9], s[0:1], %d' % KA_OUT)
    if OPT['ptc'] & 4:
        a('s_lshl_b32 s50, s%d, 12' % sX)
        a('s_add_u32 s50, s50, 0x%x' % FA2)
        a('v_and_b32 v%d, 31, v%d' % (DUM, vL))
        a('v_lshlrev_b32 v%d, 7, v%d' % (DUM, DUM))
        vm.op('tl', 'buffer_load_dword v%d, v%d, s[28:31], s50 offen sc1' % (DUM, DUM))
    if OPT['tlb'] & 1:
        a('v_min_u32 v%d, 24, v%d' % (DUM, vL))
        a('v_lshlrev_b32 v%d, 21, v%d' % (DUM, DUM))
        vm.op('tl', 'buffer_load_dword v%d, v%d, s[28:31], 0 offen offset:2048' % (DUM, DUM))
    wjob_addr(vm, 13)
    a('s_waitcnt vmcnt(%d) lgkmcnt(0)' % (4 + (OPT['tlb'] & 1) + (OPT['ptc'] >> 2 & 1)))
    a('s_barrier')
    st(a, 1)
    a('s_load_dwordx2 s[10:11], s[0:1], %d' % KA_B2)
    a('s_add_u32 s%d, s%d, 1' % (sE, sE))
    a('s_waitcnt vmcnt(%d)' % ((OPT['tlb'] & 1) + (OPT['ptc'] >> 2 & 1)))
    if OPT['lpr'] and OPT['lpp'] == 2: a('s_setprio %d' % OPT['lpr'])
    st(a, 2)
    vm.clear()
    a('s_cmp_lg_u32 s19, 0')
    a('s_cbranch_scc1 WJ_l0')
    a('s_add_u32 m0, s14, %d' % CTAB)
    a('s_add_u32 s16, s14, %d' % tables.OFF['FR'])
    for i in range(4):
        a('buffer_load_dwordx4 v%d, s[40:43], s16 offen offset:%d lds' % (vA, i * 1024))
    a.label('WJ_l0')
    a('s_cmp_lg_u32 s19, 7')
    a('s_cbranch_scc1 WJ_nl')
    a('s_mov_b32 exec_lo, 0x80808080')
    a('s_mov_b32 exec_hi, 0x80808080')
    for src in range(4):
        a('buffer_load_ushort v%d, v%d, %s, s%d offen offset:16%s' % (52 + src, WV, sr(32 + 4 * (src & 1), 4), 22 + (src >> 1), ' nt' if OPT['xnt'] & 2 else ''))
    a('s_mov_b64 exec, -1')
    a.label('WJ_nl')
    wjob(vm)
    if OPT['hs']:
        a.comment('the normalised rows leave ahead of the spectra')
        a('v_mul_u32_u24 v56, 2112, v%d' % vR4)
        a('v_lshl_add_u32 v56, v%d, 5, v56' % vG)
        a('v_lshl_add_u32 v56, v%d, 3, v56' % vCC)
        a('s_lshl_b32 s15, s13, 8')
        a('s_add_u32 s15, s15, %d' % HIMG)
        a('v_add_u32 v56, s15, v56')
        a('s_lshl_b32 s15, s13, 19')
        a('s_lshl_b32 s18, s2, 11')
        a('s_add_u32 s18, s18, s15')
        a('s_add_u32 s19, s18, 0x200000')
        a('v_add_u32 v24, %d, v%d' % (TABI + 8192, vA))
        for i in range(8):
            a('ds_read_b128 %s, v24 offset:%d' % (vr(CTWC + 4 * i, 4), i * 1024))
        lds_spin(a, 'LA_h', vCT, 80, 4, 24, 16)
        for hf in range(2):
            for i in range(2):
                for u in range(2):
                    a('ds_read_b64_tr_b16 %s, v56 offset:%d' % (vr(128 + 8 * hf + 4 * i + 2 * u, 2), u * 4 * 2112 + i * 128 + hf * 1024))
        for k in range(4):
            a('s_waitcnt lgkmcnt(%d)' % (6 - 2 * k))
            vm.op('hs', 'buffer_store_dwordx4 %s, v%d, s[28:31], s%d offen offset:%d %s' % (vr(128 + 4 * k, 4), vA, 18 + (k >> 1), (k & 1) * 1024, POL('hp')))
    if OPT['lpr'] and OPT['lpk'] == 2: a('s_setprio 0')
    if OPT['lst'] == 'a': st(a, 6)
    srd_off(a, 24, 44, 45, 0, 2048 * 7168)
    a('s_mov_b32 s15, %d' % tables.OFF['FR'])
    a('s_mov_b32 s16, %d' % tables.OFF['FI'])
    a('s_mov_b64 s[20:21], s[40:41]')
    a('s_mov_b32 s22, s42')
    a('s_mov_b32 s23, 0x20000')
    a('s_mov_b32 s42, s14')
    a('s_lshl_b32 s17, s%d, 8' % sFt)
    a('s_lshl_b32 s18, s%d, 19' % sDt)
    if OPT['spf']:
        a('s_lshr_b32 s8, s%d, 1' % sDt)
        a('s_lshl_b32 s8, s8, 6')
        a('s_and_b32 s9, s%d, 1' % sDt)
        a('s_lshl_b32 s9, s9, 3')
        a('s_add_u32 s8, s8, s9')
        a('s_lshl_b32 s9, s13, 1')
        a('s_add_u32 s8, s8, s9')
        a('s_mul_i32 s8, s8, 7168')
        a('s_add_u32 s8, s8, s17')
        a('s_add_u32 s8, s44, s8')
        a('s_addc_u32 s9, s45, 0')
    if OPT['same'] & 4: a('s_mov_b32 s17, 0')
    if OPT['same'] & 8: a('s_mov_b32 s18, 0')
    ld_addr(a, 'g1', 17, 18, LA1, LB1)
    ld_tables(a, 'G1', 'g1', 32)
    a('s_cmp_ge_u32 s2, 224')
    a('s_cbranch_scc1 LA_col')
    if OPT['hs']:
        for t in range(OPT['hA']): issueA(vm, 'g1', t)
        if OPT['xt'] == -1: xtab(vm)
        arrive(a, 'LA', 24)
        vm.wait('hs')
        st(a, 10)
        arrive(a, 'LH', 24, vCT, 84, FH, 10, 15, 3)
        nleft = 63
    else:
        q = list(vm.q)
        if OPT['xe'] == 1: x_early(vm, 'c')
        for i in range(6):
            vm.op('c', 'buffer_load_dwordx4 %s, v%d, s[20:23], s%d offen offset:%d' % (vr(CFr + 4 * i, 4), vA, 15 + (i >> 2), (i & 3) * 1024))
        for t in range(OPT['nA0']): issueA(vm, 'g1', t)
        nleft = vm.left('ws')
        a('v_add_u32 v24, %d, v%d' % (TABI + 8192, vA))
        for i in range(8):
            a('ds_read_b128 %s, v24 offset:%d' % (vr(CTWC + 4 * i, 4), i * 1024))
        a('s_waitcnt lgkmcnt(0)')
        if OPT['lst'] == 'a': st(a, 7)
        arrive(a, 'LA', 24)
        if OPT['lst'] == 'a': st(a, 8)
    a('s_cmp_lg_u32 s53, 7')
    a('s_cbranch_scc1 WJ_no512')
    a('v_bfe_u32 v%d, v%d, 3, 2' % (WV + 8, vL))
    a('v_lshlrev_b32 v%d, 4, v%d' % (WV + 8, WV + 8))
    a('v_lshrrev_b32 v%d, 5, v%d' % (WV + 9, vL))
    a('v_lshl_add_u32 v%d, v%d, 3, v%d' % (WV + 8, WV + 9, WV + 8))
    a('s_mov_b32 exec_lo, 0x80808080')
    a('s_mov_b32 exec_hi, 0x80808080')
    if not OPT['hs']: vm.wait('ws')
    for src in range(4):
        a('buffer_store_short v%d, v%d, s[28:31], s50 offen offset:%d %s' % (52 + src, WV + 8, 2 * src, SC))
    a('s_mov_b64 exec, -1')
    def fw():
        a('s_xor_b32 s15, s2, 0xe0')
        a('s_lshl_b32 s15, s15, 4')
        a('s_lshl_b32 s16, s13, 2')
        a('s_add_u32 s15, s15, s16')
        a('s_add_u32 s15, s15, 0x%x' % FW)
        post(a, 15, 24)
    if OPT['ho']:
        a('s_waitcnt vmcnt(0)')
        a.label('WJ_no512')
        st(a, 3)
        fw()
    elif OPT['hs']:
        for t in range(OPT['hA'], nA): issueA(VM(a), 'g1', t)
        a('s_waitcnt vmcnt(%d)' % (4 * (nA - OPT['hA'])))
        fw()
        a('s_branch LA_j')
        a.label('WJ_no512')
        st(a, 3)
        fw()
        for t in range(OPT['hA'], nA): issueA(vm, 'g1', t)
    else:
        a('s_waitcnt vmcnt(0)')
        a.label('WJ_no512')
        a('s_waitcnt vmcnt(%d)' % nleft)
        st(a, 3)
        fw()
    a('s_branch LA_j')
    a.label('LA_col')
    a('s_waitcnt vmcnt(%d)' % (8 if OPT['hs'] else 4))
    a('s_mov_b64 exec, 1')
    a('ds_add_u32 v%d, v%d offset:12' % (vCT, vCT + 1))
    a('s_mov_b64 exec, -1')
    lds_spin(a, 'LA_ct', vCT, 12, 4, 24, 16)
    col_tabs(a, 24)
    a('s_waitcnt lgkmcnt(0)')
    arrive(a, 'LC', 24)
    a('s_waitcnt vmcnt(0)')
    if OPT['hs']: arrive(a, 'LHC', 24, vCT, 84, FH, 10, 15, 3)
    st(a, 3)
    fw()
    if OPT['cx'] & 1: x_early(VM(a), 'x', True)
    a('s_setprio 0')
    a('s_branch COL_j')
    a.label('LA_j')
    if OPT['lpr'] and OPT['lpk'] == 0: a('s_setprio 0')
    if OPT['ho']:
        lds_spin(a, 'LA_own', vCT, 4, 8, 24, 16)
        if OPT['ho'] == 2:
            a('s_lshl_b32 s53, s%d, 10' % sX)
            a('s_add_u32 s53, s53, 0x%x' % FH)
            nr_init(a)
            vm.op('fa', flag_load('g1'))
        for t in range(OPT['hA'], nA): issueA(vm, 'g1', t)
        lds_spin(a, 'LA_own2', vCT, 84, 4, 24 if OPT['ho'] < 2 else 28, 16)
        if OPT['ho'] == 2:
            refresh(vm, 'g1')
            return vm
    elif OPT['hs']:
        lds_spin(a, 'LA_own', vCT, 84, 4, 24, 16)
    else:
        lds_spin(a, 'LA_own', vCT, 4, 8, 24, 16)
        for t in range(OPT['nA0'], nA): issueA(vm, 'g1', t)
    if OPT['fal']:
        a('v_lshrrev_b32 v21, %d, v%d' % (2 - OPT['fal'], vL))
        a('v_mul_u32_u24 v21, %d, v21' % (96 if OPT['fal'] == 1 else 112))
        a('v_add_u32 v21, v21, v%d' % vA)
    if OPT['far']:
        a('s_and_b32 s53, s2, %d' % (15 if OPT['far'] == 1 else 31))
        a('s_lshl_b32 s53, s53, 12')
    else: a('s_lshl_b32 s53, s%d, %d' % (sX, 11 + OPT['fal'] if OPT['fal'] else 10))
    a('s_add_u32 s53, s53, 0x%x' % (FH if OPT['hs'] else FA2 if OPT['fal'] else FA))
    if OPT['lazy'] & 1: nr_init(a)
    else:
        gate(a, 'LS', 8, lambda: poll(a, 'LS_poll', [flag_load('g1')], 24, 4, 16))
        a('s_mov_b64 s[%d:%d], 0' % (NR, NR + 1))

def gate(a, pfx, off, f, vct=12, scnt=16):
    a('s_cmp_lg_u32 s%d, 4' % sW)
    a('s_cbranch_scc1 %s_g1' % pfx)
    f()
    a.label(pfx + '_open')
    a('v_mov_b32 v24, 1')
    a('ds_write_b32 v%d, v24 offset:%d' % (vct, off))
    a('s_branch %s_g2' % pfx)
    a.label(pfx + '_g1')
    lds_spin(a, pfx + '_gs', vct, off, 1, 24, scnt)
    a.label(pfx + '_g2')

def c2r_parts(a):
    vY, vLin, vW, vRd, vY1 = 28, 29, 30, 31, 32
    vC, vH = 33, 34
    K20 = 36
    T0 = 40; Y = 56; Xr = 72; P = 88; U = 104
    P = 224; U = 96; NY = 88
    def setup(t):
        t('v_and_b32 v%d, 31, v%d' % (vC, vL))
        t('v_lshrrev_b32 v%d, 5, v%d' % (vH, vL))
        t('s_lshr_b32 s19, s42, 11')
        t('v_and_b32 v%d, 7, v%d' % (T0, vC))
        t('v_xor_b32 v%d, s19, v%d' % (T0, T0))
        t('v_lshlrev_b32 v%d, 4, v%d' % (T0, T0))
        t('v_lshl_add_u32 v%d, v%d, 7, v%d' % (T0, vC, T0))
        t('v_lshl_add_u32 v%d, v%d, 12, v%d' % (T0, vH, T0))
        t('v_add_u32 v%d, %d, v%d' % (vY, C2RS, T0))
        t('v_xor_b32 v%d, 16, v%d' % (vY1, vY))
        t('v_lshrrev_b32 v%d, 3, v%d' % (T0, vL))
        t('v_xor_b32 v26, v%d, v%d' % (T0, vL))
        t('v_and_b32 v26, 7, v26')
        t('v_lshlrev_b32 v26, 4, v26')
        t('v_lshl_add_u32 v26, v%d, 7, v26' % T0)
        t('s_lshl_b32 s19, s%d, 7' % sX)
        t('v_lshl_add_u32 v27, v%d, 2, s19' % vC)
        t('v_mov_b32 v%d, 0x%x' % (T0, FN - FC))
        t('v_cmp_gt_u32 vcc, 32, v%d' % vL)
        t('v_cndmask_b32 v27, v%d, v27, vcc' % T0)
        t('v_lshlrev_b32 v%d, 4, v%d' % (vLin, vL))
        t('s_and_b32 s18, s2, 31')
        t('s_lshr_b32 s19, s2, 5')
        t('s_lshl_b32 s19, s19, 7')
        t('s_add_u32 s18, s18, s19')
        t('s_lshl_b32 s18, s18, 12')
        t('s_lshl_b32 s19, s42, 5')
        t('s_add_u32 s18, s18, s19')
        t('s_add_u32 s19, s42, %d' % (2 * SLOT))
        t('v_lshrrev_b32 v%d, 1, v%d' % (T0, vC))
        t('v_and_b32 v%d, 3, v%d' % (T0, T0))
        t('v_lshlrev_b32 v%d, 4, v%d' % (T0, T0))
        t('v_lshl_add_u32 v%d, v%d, 6, v%d' % (T0, vC, T0))
        t('v_lshl_add_u32 v%d, v%d, 3, v%d' % (T0, vH, T0))
        t('v_add_u32 v%d, s19, v%d' % (vW, T0))
        t('v_lshrrev_b32 v%d, 3, v%d' % (T0, vL))
        t('v_xor_b32 v%d, v%d, v%d' % (T0, T0, vL))
        t('v_and_b32 v%d, 3, v%d' % (T0, T0))
        t('v_lshlrev_b32 v%d, 4, v%d' % (T0, T0))
        t('v_lshrrev_b32 v%d, 2, v%d' % (T0 + 1, vL))
        t('v_lshl_add_u32 v%d, v%d, 6, v%d' % (T0, T0 + 1, T0))
        t('v_add_u32 v%d, s19, v%d' % (vRd, T0))
        t('v_mov_b32 v%d, %s' % (K20, fl(2.0 ** -20)))
        t('v_mov_b32 v35, 0')
    def yloads(vm):
        a = vm.a
        a('s_mul_i32 s19, s2, 0x%x' % YS())
        a('s_add_u32 s19, s19, s42')
        a('s_add_u32 s19, s19, 0x%x' % YG)
        a('s_add_u32 m0, s42, %d' % C2RS)
        for i in range(4):
            vm.op('y', 'buffer_load_dwordx4 v26, s[28:31], s19 offen offset:%d sc1 lds' % (i * 1024))
        a('s_lshr_b32 s19, s18, 9')
        a('s_add_u32 s19, s19, 0x%x' % YN)
        vm.op('y', 'buffer_load_dwordx2 %s, v35, s[28:31], s19 offen sc1' % vr(NY, 2))
        a('s_lshr_b32 s19, s18, 10')
        vm.op('y', 'buffer_load_dword v%d, v35, s[24:27], s19 offen' % (NY + 2))
    def yreads(t):
        for p in range(2):
            for q in range(2):
                t('ds_read_b128 %s, v%d offset:%d' % (vr(Y + 8 * p + 4 * q, 4), vY1 if p else vY, q * 8192))
    def xloads(vm):
        for i in range(4):
            vm.op('x', 'buffer_load_dwordx4 %s, v%d, s[36:39], s18 offen offset:%d%s' % (vr(Xr + 4 * i, 4), vLin, i * 1024, ' nt' if OPT['xnt'] & 1 else ''))
    t = Asm()
    def st1(p):
        o = []
        for q in range(2):
            o.append('%s %s, %s, %s, %s' % (MF, vr(U + 32 * p, 16), vr(Y + 8 * p + 4 * q, 4), vr(CFr + 4 * q, 4), '0' if q == 0 else vr(U + 32 * p, 16)))
            o.append('%s %s, %s, %s, %s' % (MF, vr(U + 32 * p + 16, 16), vr(Y + 8 * p + 4 * q, 4), vr(CFi + 4 * q, 4), '0' if q == 0 else vr(U + 32 * p + 16, 16)))
        return o
    def st2(p, Pp):
        return ['%s %s, %s, %s, %s' % (MF, vr(U + 32 * p, 16), vr(Pp + 4 * g, 4), vr(CFr + 4 * g, 4), '0' if g == 0 else vr(U + 32 * p, 16)) for g in range(4)]
    for m in st1(0) + st1(1): t(m)
    twiddle_pack(t, U, U + 16, CTWC, CTWS, P, T0)
    interleave(t, st2(0, P), cap(lambda u: twiddle_pack(u, U + 32, U + 48, CTWC, CTWS, Y, T0)))
    def outw(p):
        def f(u):
            for g in range(4):
                u('v_cvt_pk_bf16_f32 v%d, v%d, v%d' % (T0 + 2 * g, U + 32 * p + 4 * g, U + 32 * p + 4 * g + 1))
                u('v_cvt_pk_bf16_f32 v%d, v%d, v%d' % (T0 + 2 * g + 1, U + 32 * p + 4 * g + 2, U + 32 * p + 4 * g + 3))
                u('v_xor_b32 v%d, %d, v%d' % (T0 + 8 + g, 16 * g, vW))
                u('ds_write_b64 v%d, %s offset:%d' % (T0 + 8 + g, vr(T0 + 2 * g, 2), 2048 * p))
        return f
    interleave(t, st2(1, Y), cap(outw(0)))
    outw(1)(t)
    for i in range(4):
        t('ds_read_b128 %s, v%d offset:%d' % (vr(P + 4 * i, 4), vRd, 1024 * i))
    t('v_lshlrev_b32 v%d, 16, v%d' % (NY + 4, NY + 2))
    t('v_and_b32 v%d, 0xffff0000, v%d' % (NY + 6, NY + 2))
    for p in range(2):
        t('v_fma_f32 v%d, -v%d, v%d, v%d' % (NY + 5 + 2 * p, NY + p, K20, NY + 4 + 2 * p))
        t('v_fmac_f32 v%d, v%d, v%d' % (NY + 4 + 2 * p, NY + p, K20))
    for i in range(4):
        A = U + 16 * i; B = A + 8
        unpack(t, A, Xr + 4 * i, 4)
        for j in range(0, 8, 2):
            t('v_pk_add_f32 %s, %s, %s' % (vr(A + j, 2), vr(A + j, 2), vr(NY + 4 + 2 * (i >> 1), 2)))
        t('s_waitcnt lgkmcnt(%d)' % (3 - i))
        unpack(t, B, P + 4 * i, 4)
        for j in range(8):
            t('v_fmac_f32 v%d, v%d, v%d' % (A + j, B + j, K20))
    comp = list(t.lines)
    def final(a):
        Q = 56
        def f():
            a('s_lshl_b32 s15, s%d, 3' % sX)
            a('s_add_u32 s15, s15, s%d' % sI)
            a('s_lshl_b32 s15, s%d, %d' % (2 if OPT['fpl'] == 2 else 15, 12 if OPT['fpl'] else 7))
            a('s_add_u32 s15, s15, 0x%x' % (PART if OPT['fpl'] == 2 else FP))
            a('v_lshlrev_b32 v27, %d, v%d' % (7 if OPT['fpl'] else 2, vC))
            if OPT['fown']: lds_spin(a, 'FIN_o', vCT, 40, 4, 24, 16)
            poll(a, 'FIN_p', ['buffer_load_dword v24, v27, s[28:31], s15 offen sc1'], 24, 1, 16)
        gate(a, 'FING', 32, f)
        if not OPT['lst']: st(a, 10)
        a('s_add_u32 s19, s18, 0x%x' % (WT if OPT['pal'] else PART))
        a('s_add_u32 s20, s19, 0x%x' % (ZG - WT if OPT['pal'] else 0x400000))
        for i in range(4):
            for k in range(2):
                a('buffer_load_dwordx4 %s, v%d, s[28:31], s%d offen offset:%d sc1' % (vr(Q + 8 * i + 4 * k, 4), vLin, 19 + k, i * 1024))
        for i in range(4):
            A = U + 16 * i; B = A + 8
            for k in range(2):
                a('s_waitcnt vmcnt(%d)' % (7 - 2 * i - k + i))
                unpack(a, B, Q + 8 * i + 4 * k, 4)
                for j in range(0, 8, 2):
                    a('v_pk_add_f32 %s, %s, %s' % (vr(A + j, 2), vr(A + j, 2), vr(B + j, 2)))
            for j in range(4):
                a('v_cvt_pk_bf16_f32 v%d, v%d, v%d' % (B + j, A + 2 * j, A + 2 * j + 1))
            a('buffer_store_dwordx4 %s, v%d, s[32:35], s18 offen offset:%d%s' % (vr(B, 4), vLin, i * 1024, ['', ' nt', ' sc1', ' sc0 sc1', ' nt sc1'][OPT['ont']]))
    return setup, yloads, xloads, comp, final, yreads

def g1_loader(a):
    vm = VM(a)
    T = 32
    lz = OPT['lazy'] & 1
    for t in range(4):
        if t >= OPT['nA']: issueA(vm, 'g1', t)
        if lz: lgate(a, 'g1', t, 8, t + 1)
        if t == 0: st(a, 4)
        if t == 2 and OPT['hs']: lds_spin(a, 'G1L_z', vCT, 88, 4, 24, 16)
        issueB(vm, 'g1', t)
    if OPT['hs'] and OPT['xt'] == -2: xtab(vm)
    for t in range(-1, T - 1):
        vm.wait(('g1', t + 1))
        if lz and t in (OPT['rf1'] + 1, OPT['rf1'] + 4): refresh(vm, 'g1')
        if lz and t >= 0 and t + 4 < T: guard(a, 'g1', t + 4)
        a('s_barrier')
        if t == -1: st(a, 5)
        if lz and t in (OPT['rf1'] - 1, OPT['rf1'] + 2): vm.op('fa', flag_load('g1'))
        if OPT['lst'] == 'g1' and (t + 1) % 4 == 0: st(a, 1 + (t + 1) // 4)
        if t == 28:
            a('s_or_b32 s15, s2, s42')
            a('s_cbranch_scc1 G1L_ne')
            a('s_mov_b32 s15, 0x%x' % EPOCH)
            post(a, 15, 24)
            a.label('G1L_ne')
        if t >= 0 and t + 4 < T:
            if OPT['bfirst']: issueB(vm, 'g1', t + 4); issueA(vm, 'g1', t + 4)
            else: issueA(vm, 'g1', t + 4); issueB(vm, 'g1', t + 4)
        if t >= 0:
            u = t + 4 + OPT['spf']
            if u < T: spf(a, 'g1', u)
            else: spf(a, 'g2', u - T + 3)
        if t == 1:
            g2_lsetup(a, 'G2a')
        if t == 16 and OPT['ptc'] & 2:
            a('s_lshl_b32 s15, s%d, 1' % sDt)
            a('s_add_u32 s15, s15, s14')
            a('s_lshl_b32 s15, s15, 11')
            a('s_add_u32 s15, s15, 0x%x' % FG2)
            a('v_and_b32 v%d, 15, v%d' % (DUM, vL))
            a('v_lshlrev_b32 v%d, 7, v%d' % (DUM, DUM))
            vm.op('tl', 'buffer_load_dword v%d, v%d, s[28:31], s15 offen sc1' % (DUM, DUM))
        if t == 16 and OPT['tlb'] & 8:
            a('v_min_u32 v%d, 4, v%d' % (DUM, vL))
            a('v_add_u32 v%d, 8, v%d' % (DUM, DUM))
            a('v_lshlrev_b32 v%d, 21, v%d' % (DUM, DUM))
            vm.op('tl', 'buffer_load_dword v%d, v%d, s[28:31], 0 offen offset:2048' % (DUM, DUM))
            a('v_min_u32 v%d, 13, v%d' % (DUM - 1, vL))
            a('v_lshlrev_b32 v%d, 20, v%d' % (DUM - 1, DUM - 1))
            vm.op('tl', 'buffer_load_dword v%d, v%d, s[32:35], 0 offen' % (DUM - 1, DUM - 1))
        if t == 30 and OPT['xe'] == 2: x_early(VM(a), 'x')
        if OPT['hs'] and OPT['xt'] >= 0 and t == OPT['xt']: xtab(vm, True, False)
        if OPT['hs'] and OPT['xt'] >= 0 and t == OPT['xt'] + 2: xtab(vm, False, True)
        if t >= 28: issueA(vm, 'g2', t - 28)
    return vm

C2R = None
def g2_loader(a, vm):
    T = 28
    setup, yloads, xloads, comp, final, yreads = C2R
    lz = OPT['lazy'] & 2
    def fg_addr():
        a('s_lshl_b32 s53, s%d, 1' % sDt)
        a('s_add_u32 s53, s53, s14')
        a('s_lshl_b32 s53, s53, %d' % [8, 11, 13][OPT['fgl']])
        a('s_add_u32 s53, s53, 0x%x' % (FG2 if OPT['fgl'] else FG))
        if OPT['fgr']:
            a('s_and_b32 s16, s%d, 3' % sI)
            a('s_lshl_b32 s16, s16, 15')
            a('s_add_u32 s53, s53, s16')
        a('v_min_u32 v23, 55, v%d' % vL)
        if OPT['fgl'] == 2: a('v_lshlrev_b32 v23, 7, v23')
        elif OPT['fgl']:
            a('v_lshrrev_b32 v22, 2, v23')
            a('v_mul_u32_u24 v22, 112, v22')
            a('v_lshl_add_u32 v23, v23, 2, v22')
        else: a('v_lshlrev_b32 v23, 2, v23')
        nr_init(a)
    fb = 'buffer_load_dword v25, v27, s[28:31], s19 offen sc1'
    if lz:
        a('s_branch G2_L1')
        a.label('G2_L')
        fg_addr()
        lgate(a, 'g2', 0, 36, 1)
        v2 = VM(a)
        issueB(v2, 'g2', 0); issueB(v2, 'g2', 1)
        if OPT['cx'] & 2:
            a('s_waitcnt vmcnt(4)')
            if not OPT['lst']: st(a, 7)
            a('s_barrier')
            lgate(a, 'g2', 2, 36, 2, 'c')
            if not OPT['lst'] and not OPT['colst']: st(a, 8)
            issueB(v2, 'g2', 2); issueA(v2, 'g2', 3); issueB(v2, 'g2', 3)
            a('s_waitcnt vmcnt(12)')
            a('s_barrier')
            issueA(v2, 'g2', 4)
            lgate(a, 'g2', 4, 36, 3, 'c')
            issueB(v2, 'g2', 4)
            a('s_branch G2_L3')
        else:
            a('s_waitcnt vmcnt(0)')
            a('s_branch G2_L2')
        a.label('G2_L1')
        fg_addr()
        a.label('G2_L2')
        vm.q = vm.q[-12:]
        if not OPT['lst']: st(a, 7)
    else:
        a.label('G2_L')
        vm.clear()
        if not OPT['lst']: st(a, 7)
        fg_addr()
        gate(a, 'G2L', 36, lambda: poll(a, 'G2L_p', [flag_load('g2')], 24, 1, 16))
        if not OPT['lst'] and not OPT['colst']: st(a, 8)
        issueB(vm, 'g2', 0); issueA(vm, 'g2', 3)
        for t in range(1, 4): issueB(vm, 'g2', t)
    for t in range(-1, T - 1):
        vm.wait(('g2', t + 1))
        if lz and t in (OPT['rf2'] + 2, OPT['rf2'] + 5): refresh(vm, 'g2')
        if lz and t >= 1 and t + 4 < T: guard(a, 'g2', t + 4)
        a('s_barrier')
        if lz and t in (OPT['rf2'], OPT['rf2'] + 3): vm.op('fa', flag_load('g2'))
        if lz and t == -1: issueA(vm, 'g2', 3)
        if lz and t == 0:
            issueA(vm, 'g2', 4)
            lgate(a, 'g2', 2, 36, 2)
            if not OPT['lst'] and not OPT['colst']: st(a, 8)
            issueB(vm, 'g2', 2); issueB(vm, 'g2', 3)
            lgate(a, 'g2', 4, 36, 3)
            issueB(vm, 'g2', 4)
            a.label('G2_L3')
            continue
        if OPT['lst'] == 'g2' and (t + 1) % 4 == 0: st(a, 1 + (t + 1) // 4)
        if t >= 0 and t + 4 < T:
            if OPT['bfirst']: issueB(vm, 'g2', t + 4); issueA(vm, 'g2', t + 4)
            else: issueA(vm, 'g2', t + 4); issueB(vm, 'g2', t + 4)
        if t == 1:
            setup(a)
            srd_off(a, 24, 10, 11, 0, 4096)
        if t == OPT['pt0'] and OPT['ptc'] & 1:
            a('s_lshl_b32 s15, s%d, 3' % sX)
            a('s_add_u32 s15, s15, s%d' % sI)
            a('s_lshl_b32 s15, s15, 12')
            a('s_add_u32 s15, s15, 0x%x' % FP)
            a('v_and_b32 v%d, 31, v%d' % (DUM, vL))
            a('v_lshlrev_b32 v%d, 7, v%d' % (DUM, DUM))
            vm.op('tl', 'buffer_load_dword v%d, v%d, s[28:31], s15 offen sc1' % (DUM, DUM))
        if t == OPT['pt0'] + 1 and OPT['ptc'] & 32:
            a('s_mul_i32 s15, s14, 0x%x' % (ZG - WT))
            a('s_lshl_b32 s16, s13, 18')
            a('s_add_u32 s15, s15, s16')
            a('s_lshl_b32 s16, s%d, 8' % sDt)
            a('s_add_u32 s15, s15, s16')
            a('s_lshl_b32 s16, s42, 4')
            a('s_add_u32 s15, s15, s16')
            a('s_add_u32 s15, s15, 0x%x' % WT)
            a('v_and_b32 v%d, 15, v%d' % (DUM - 1, vL))
            a('v_lshlrev_b32 v%d, 12, v%d' % (DUM - 1, DUM - 1))
            vm.op('tl', 'buffer_load_dword v%d, v%d, s[28:31], s15 offen sc1' % (DUM - 1, DUM - 1))
        if t == OPT['pt0'] + 2 and OPT['ptc'] & 64:
            a('s_add_u32 s15, s18, 0x%x' % WT)
            a('v_and_b32 v%d, 1, v%d' % (DUM - 2, vL))
            a('v_mul_u32_u24 v%d, 0x%x, v%d' % (DUM - 2, (ZG - WT) >> 1, DUM - 2))
            a('v_lshlrev_b32 v%d, 1, v%d' % (DUM - 2, DUM - 2))
            vm.op('tl', 'buffer_load_dword v%d, v%d, s[28:31], s15 offen sc1' % (DUM - 2, DUM - 2))
        if t == OPT['pt0'] + 2 and OPT['ptc'] & 128:
            a('s_lshl_b32 s15, s13, 3')
            a('s_add_u32 s15, s15, s%d' % sDt)
            a('s_lshl_b32 s15, s15, 8')
            a('s_add_u32 s15, s15, 0x%x' % FP)
            a('v_and_b32 v%d, 7, v%d' % (DUM - 3, vL))
            a('v_lshlrev_b32 v%d, 15, v%d' % (DUM - 3, DUM - 3))
            vm.op('tl', 'buffer_load_dword v%d, v%d, s[28:31], s15 offen sc1' % (DUM - 3, DUM - 3))
        if t == OPT['pt0'] and OPT['ptc'] & 256:
            srd_off(a, 36, 8, 9, 0, 4 * MB)
            a('v_mov_b32 v%d, 0' % (DUM - 4))
            vm.op('tl', 'buffer_load_dword v%d, v%d, s[36:39], s18 offen' % (DUM - 4, DUM - 4))
        if t == OPT['pt0'] and OPT['ptc'] & 8:
            srd_off(a, 36, 8, 9, 0, 4 * MB)
            a('v_and_b32 v%d, 31, v%d' % (DUM - 1, vL))
            a('v_lshlrev_b32 v%d, 7, v%d' % (DUM - 1, DUM - 1))
            vm.op('tl', 'buffer_load_dword v%d, v%d, s[36:39], s18 offen' % (DUM - 1, DUM - 1))
        if t == OPT['tl2'] and OPT['tlb'] & 2:
            a('v_min_u32 v%d, 12, v%d' % (DUM, vL))
            a('v_add_u32 v%d, 12, v%d' % (DUM, DUM))
            a('v_lshlrev_b32 v%d, 21, v%d' % (DUM, DUM))
            vm.op('tl', 'buffer_load_dword v%d, v%d, s[28:31], 0 offen offset:2048' % (DUM, DUM))
        if t == 24 and OPT['tlb'] & 4:
            srd_off(a, 32, 8, 9, 0, 4 * MB)
            a('v_min_u32 v%d, 3, v%d' % (DUM, vL))
            a('v_lshlrev_b32 v%d, 20, v%d' % (DUM, DUM))
            vm.op('tl', 'buffer_load_dword v%d, v%d, s[32:35], 0 offen' % (DUM, DUM))
        if t == OPT['c2r0']:
            a('s_mov_b32 s19, 0x%x' % FC)
            vm.op('fl', fb)
        if t == OPT['c2r0'] + 3:
            vm.wait('fl')
            neq4(a, 25, 1)
            a('s_cbranch_vccz G2L_bok')
            poll(a, 'G2L_bp', [fb], 25, 1, 16)
            a.label('G2L_bok')
            yloads(vm)
        if t == 24:
            srd_off(a, 32, 8, 9, 0, 4 * MB)
    if not OPT['colst']: st(a, 9)
    vm.wait('y')
    a('s_mov_b64 exec, 1')
    a('ds_add_u32 v%d, v%d offset:44' % (vCT, vCT + 1))
    a('s_mov_b64 exec, -1')
    lds_spin(a, 'C2R_s', vCT, 44, 4, 24, 16)
    yreads(a)
    a('s_waitcnt lgkmcnt(0)')
    for l in comp: a.raw(l)
    if not OPT['lst']: st(a, 6)
    final(a)
    st_out(a)
    a('s_endpgm')

def prio_wrap(a, f):
    t = Asm(); f(t)
    on = False
    for l in t.lines:
        c = l.strip().startswith('v_cvt_pk')
        keep = on and l.strip().startswith(('ds_write', 'v_mfma'))
        if OPT['cprio'] and c and not on: a('s_setprio 1'); on = True
        if on and not c and not keep: a('s_setprio 0'); on = False
        a.raw(l)
    if on: a('s_setprio 0')

def col(a):
    from gen_col import IN, T1, T2, WR
    def fft_sep(t):
        from gen_col import s1, s2, TWC, TWS
        for m in s1(IN, T1) + s1(IN + 16, T2): t(m)
        twiddle_pack(t, T1, T1 + 16, TWC, TWS, IN, TT)
        twiddle_pack(t, T2, T2 + 16, TWC, TWS, IN + 16, TT)
        for m in s2(IN, T1) + s2(IN + 16, T2): t(m)
    fft_pair = lambda a: prio_wrap(a, fft_sep if OPT['csep'] else gen_col.fft_pair)
    pointwise = lambda a: prio_wrap(a, lambda t: gen_col.pointwise(t, OPT['ppk']))
    cL, vC, vH, vI, vI1, vW, vSW, vRe, vRo, vSt = 1, 2, 3, 6, 7, 8, 9, 10, 11, 12
    sC, sQk, sV, sB, sEe, sK, sRd = 19, 13, 14, 15, 16, 17, 18
    a.label('COL_j')
    a('s_sub_u32 s%d, s2, 224' % sC)
    a('s_lshr_b32 s%d, s%d, 3' % (sQk, sC))
    a('s_and_b32 s%d, s%d, 7' % (sV, sC))
    a('s_lshr_b32 s%d, s%d, 2' % (sB, sW))
    a('s_and_b32 s%d, s%d, 3' % (sEe, sW))
    a('v_lshlrev_b32 v%d, 4, v%d' % (vW, cL))
    a('s_lshl_b32 s%d, s%d, 2' % (sK, sQk))
    a('s_add_u32 s%d, s%d, s%d' % (sK, sK, sEe))
    a('s_lshl_b32 s%d, s%d, 5' % (sK, sK))
    a('s_lshl_b32 s22, s%d, 2' % sV)
    a('s_add_u32 s%d, s%d, s22' % (sK, sK))
    a('s_add_u32 s%d, s%d, s%d' % (sK, sK, sB))
    vWl = 0
    a('v_lshrrev_b32 v%d, 2, v%d' % (TT, cL))
    a('v_and_b32 v%d, 3, v%d' % (vWl, cL))
    a('v_lshlrev_b32 v%d, 4, v%d' % (vWl, vWl))
    a('v_lshl_add_u32 v%d, v%d, 7, v%d' % (vWl, TT, vWl))
    def wload():
        a('s_lshr_b32 s22, s%d, 1' % sK)
        a('s_mul_i32 s22, s22, 0x%x' % WS_())
        a('s_and_b32 s23, s%d, 1' % sK)
        a('s_lshl_b32 s23, s23, 6')
        a('s_add_u32 s22, s22, s23')
        a('s_add_u32 s22, s22, 0x%x' % WT)
        for i in range(8):
            a('buffer_load_dwordx4 %s, v%d, s[28:31], s22 offen offset:%d sc1' % (vr(WR + 4 * i, 4), vWl, (i & 1) * 2048))
            if i & 1 and i < 7: a('s_add_u32 s22, s22, 4096')
    a('v_and_b32 v%d, 31, v%d' % (vC, cL))
    a('v_lshrrev_b32 v%d, 5, v%d' % (vH, cL))
    a('v_lshrrev_b32 v%d, 1, v%d' % (TT, vC))
    a('v_xor_b32 v%d, s%d, v%d' % (TT, sEe, TT))
    a('v_and_b32 v%d, 7, v%d' % (TT, TT))
    a('v_lshlrev_b32 v%d, 4, v%d' % (TT, TT))
    a('v_lshl_add_u32 v%d, v%d, 7, v%d' % (TT, vC, TT))
    a('v_lshl_add_u32 v%d, v%d, 12, v%d' % (TT, vH, TT))
    a('s_lshl_b32 s22, s%d, 15' % sB)
    a('v_add_u32 v%d, s22, v%d' % (vI, TT))
    a('v_xor_b32 v%d, 64, v%d' % (vI1, vI))
    a('v_lshlrev_b32 v%d, 4, v%d' % (TT, vC))
    a('v_lshl_add_u32 v%d, v%d, 9, v%d' % (TT, vH, TT))
    a('s_lshl_b32 s23, s%d, 6' % sEe)
    a('v_xor_b32 v%d, s23, v%d' % (TT, TT))
    a('s_lshl_b32 s23, s%d, 13' % sEe)
    a('s_add_u32 s23, s23, s22')
    a('v_add_u32 v%d, s23, v%d' % (vSW, TT))
    a('v_bfe_u32 v%d, v%d, 2, 2' % (TT, cL))
    a('v_lshrrev_b32 v%d, 4, v%d' % (TT + 1, cL))
    a('v_lshlrev_b32 v%d, 5, v%d' % (TT + 1, TT + 1))
    a('v_and_b32 v%d, 3, v%d' % (TT + 2, cL))
    a('v_lshl_add_u32 v%d, v%d, 3, v%d' % (TT + 1, TT + 2, TT + 1))
    a('v_lshlrev_b32 v%d, 6, v%d' % (TT + 3, TT))
    a('v_xor_b32 v%d, v%d, v%d' % (TT + 1, TT + 1, TT + 3))
    a('v_lshl_add_u32 v%d, v%d, 13, v%d' % (TT + 1, TT, TT + 1))
    a('s_lshl_b32 s23, s%d, 10' % sEe)
    a('s_add_u32 s23, s23, s22')
    a('v_add_u32 v%d, s23, v%d' % (vRe, TT + 1))
    a('v_xor_b32 v%d, 128, v%d' % (vRo, vRe))
    a('v_lshrrev_b32 v%d, 3, v%d' % (TT, cL))
    a('v_mul_u32_u24 v%d, 0x%x, v%d' % (TT, YS(), TT))
    a('v_and_b32 v%d, 7, v%d' % (TT + 2, cL))
    a('v_lshl_add_u32 v%d, v%d, 4, v%d' % (vSt, TT + 2, TT))
    a('s_mul_i32 s24, s%d, 0x%x' % (sEe, 64 * YS()))
    a('s_lshl_b32 s22, s%d, 12' % sQk)
    a('s_add_u32 s24, s24, s22')
    a('s_lshl_b32 s22, s%d, 9' % sV)
    a('s_add_u32 s24, s24, s22')
    a('s_lshl_b32 s22, s%d, 7' % sB)
    a('s_add_u32 s24, s24, s22')
    a('s_add_u32 s24, s24, 0x%x' % YG)
    a('s_mov_b32 s50, 2.0')
    a('s_mov_b32 s51, 2.0')
    a('s_mov_b32 s%d, 0' % sRd)
    if OPT['opf']:
        a.comment('weight lines of the second product are touched while the columns are transformed')
        a('s_load_dwordx2 s[44:45], s[0:1], %d' % KA_W2)
        a('s_min_u32 s64, s%d, 27' % sC)
        a('s_cmp_ge_u32 s64, 14')
        a('s_cselect_b32 s65, 14, 0')
        a('s_sub_u32 s64, s64, s65')
        a('s_mul_i32 s65, s65, %d' % (128 * 4096))
        a('s_cmp_ge_u32 s64, 7')
        a('s_addc_u32 s66, s64, 0')
        a('s_lshl_b32 s66, s66, 8')
        a('s_add_u32 s65, s65, s66')
        a('s_lshl_b32 s64, s64, 1')
        a('s_add_u32 s64, s64, s%d' % sW)
        a('s_add_u32 s64, s64, %d' % OPT['op0'])
        a('v_lshrrev_b32 v28, 1, v%d' % cL)
        a('v_and_b32 v29, 1, v%d' % cL)
        a('v_lshlrev_b32 v29, 7, v29')
        a('v_lshl_add_u32 v28, v28, 12, v29')
        a('s_waitcnt lgkmcnt(0)')
        srd_off(a, 60, 44, 45, 0, 3584 * 4096)
    if OPT['cpo']:
        a('v_mov_b32 v31, v28')
        a('s_cmp_lt_u32 s%d, 4' % sW)
        a('s_cbranch_scc1 COL_pr')
        if OPT['cpo'] == 1:
            a('s_mov_b32 s67, s15')
            g2_ids(a, 64, 65)
            a('s_mov_b32 s15, s67')
            a('s_mul_i32 s65, s65, %d' % (1792 * 4096))
            a('s_lshl_b32 s64, s64, 8')
            a('s_add_u32 s65, s65, s64')
            a('s_lshl_b32 s64, s%d, 2' % sDt)
            a('s_add_u32 s64, s64, s%d' % sEe)
            a('s_mul_i32 s64, s64, %d' % (56 * 4096))
            a('s_add_u32 s65, s65, s64')
            a('v_lshrrev_b32 v31, 1, v%d' % cL)
            a('v_min_u32 v31, 23, v31')
            a('v_lshl_add_u32 v31, v31, 12, v29')
        else:
            a('v_mov_b32 v28, 0')
            a('v_mov_b32 v31, 0')
        a('s_mov_b32 s64, 0')
        a.label('COL_pr')
    def opf(k):
        a('s_add_u32 s66, s64, %d' % (8 * k))
        a('s_cmp_ge_u32 s66, 28')
        a('s_cselect_b32 s67, 28, 0')
        a('s_sub_u32 s66, s66, s67')
        a('s_cmp_ge_u32 s66, 28')
        a('s_cselect_b32 s67, 28, 0')
        a('s_sub_u32 s66, s66, s67')
        a('s_lshl_b32 s66, s66, 18')
        a('s_add_u32 s66, s66, s65')
        a('buffer_load_dword v29, v28, s[60:63], s66 offen')
        a('s_add_u32 s66, s66, %d' % (32 * 4096))
        a('buffer_load_dword v29, v%d, s[60:63], s66 offen' % (31 if OPT['cpo'] else 28))
    for k in range(OPT['ope']): opf(OPT['opf'] + k)
    def cs(i):
        if OPT['colst'] == 2 and i < 9:
            a('s_cmp_lg_u32 s%d, 0' % sRd)
            a('s_cbranch_scc1 COL_cs%d' % i)
            stc(a, i)
            a.label('COL_cs%d' % i)
        elif OPT['colst']: stc(a, i)
    vCt, vOne, vSp, vCg = 13, 14, 15, 4
    a('v_mov_b32 v%d, %d' % (vCt, CTL))
    a('v_mov_b32 v%d, 1' % vOne)
    a('s_lshl_b32 s22, s%d, 4' % sB)
    a('s_add_u32 s22, s22, %d' % (CTL + 48))
    a('v_mov_b32 v%d, s22' % vCg)
    for it in range(8):
        a('s_add_u32 s%d, s24, %d' % (32 + it, it * 8 * YS()))
    def count(off, v=vCt):
        a('s_mov_b64 exec, 1')
        a('ds_add_u32 v%d, v%d offset:%d' % (v, vOne, off))
        a('s_mov_b64 exec, -1')
    def trreads(dst):
        for it in range(8):
            for rho in range(2):
                a('ds_read_b64_tr_b16 %s, v%d offset:%d' % (vr(dst + 4 * it + 2 * rho, 2), vRo if it & 1 else vRe, 256 * (it >> 1) + rho * 4096))
    def wpoll(lab):
        a('s_lshr_b32 s22, s%d, 6' % sK)
        a('s_min_u32 s22, s22, 7')
        a('s_lshl_b32 s22, s22, 9')
        a('s_add_u32 s22, s22, 0x%x' % FW)
        a('v_lshlrev_b32 v%d, 3, v%d' % (TT, cL))
        poll(a, lab, ['buffer_load_dwordx2 %s, v%d, s[28:31], s22 offen sc1' % (vr(IN, 2), TT)], IN, 2, 23)
    a('s_cmp_ge_u32 s%d, 4' % sW)
    a('s_cbranch_scc1 COL_l2')
    wpoll('COL_wp')
    wload()
    a('s_waitcnt vmcnt(0)')
    st(a, 5)
    a('s_barrier')
    if OPT['opr']:
        a('s_add_u32 s64, s64, %d' % (8 * OPT['opf']))
        for k in range(OPT['opr']):
            opf(0)
            a('s_add_u32 s64, s64, 4')
        a('s_sub_u32 s64, s64, %d' % (8 * OPT['opf'] + 4 * OPT['opr']))
    a('s_branch %s' % ('HCOL_in' if OPT['cph'] and OPT['cpr'] else 'COL_in'))
    a.label('COL_l2')
    if OPT['fal']:
        a('v_lshrrev_b32 v30, %d, v%d' % (2 - OPT['fal'], cL))
        a('v_mul_u32_u24 v30, %d, v30' % (96 if OPT['fal'] == 1 else 112))
        a('v_add_u32 v30, v30, v%d' % vW)
    if OPT['far']:
        a('s_and_b32 s25, s2, %d' % (15 if OPT['far'] == 1 else 31))
        a('s_lshl_b32 s25, s25, 12')
    else: a('s_lshl_b32 s25, s%d, %d' % (sX, 11 + OPT['fal'] if OPT['fal'] else 10))
    a('s_add_u32 s25, s25, 0x%x' % (FA2 if OPT['fal'] else FA))
    fl_ = 'buffer_load_dwordx4 v[24:27], v%d, s[28:31], s25 offen sc1' % (30 if OPT['fal'] else vW)
    a('s_lshl_b32 s20, s%d, 2' % sC)
    a('s_lshr_b32 s21, s%d, 1' % sEe)
    a('s_add_u32 s20, s20, s21')
    a('s_mul_i32 s20, s20, 0x%x' % ZS())
    a('s_and_b32 s21, s%d, 1' % sEe)
    a('s_lshl_b32 s21, s21, 14')
    a('s_add_u32 s20, s20, s21')
    a('s_add_u32 s20, s20, 0x%x' % ZG)
    a('s_lshl_b32 s21, s42, 2')
    if OPT['lazy'] & 4:
        a.comment('first half: one KB (eight producers) at a time, as soon as their flags are up')
        lds_spin(a, 'CZ_own', vCt, 4, 8, 24, 23)
        a('s_mov_b64 s[26:27], -1')
        a('s_and_b32 s22, s%d, 1' % sW)
        a('s_lshl_b32 s22, s22, 5')
        a('s_lshr_b64 s[26:27], s[26:27], s22')
        a('s_mov_b32 m0, s21')
        a('s_mov_b32 s44, s20')
        a('s_mov_b32 s45, 0')
        a('s_mov_b32 s23, %d' % POLL_MAX)
        a.label('CZ_l')
        a('s_lshr_b32 s43, s26, s45')
        a('s_and_b32 s43, s43, 3')
        a('s_cbranch_scc0 CZ_go')
        a(fl_)
        a('s_waitcnt vmcnt(0)')
        neq4(a, 24, 4)
        a('s_lshr_b64 s[26:27], vcc, s22')
        a('s_sub_u32 s23, s23, 1')
        a('s_cselect_b32 s26, 0, s26')
        a('s_branch CZ_l')
        a.label('CZ_go')
        a('buffer_load_dwordx4 v%d, s[28:31], s44 offen sc1 lds' % vW)
        a('s_add_u32 m0, m0, 1024')
        a('s_add_u32 s44, s44, 1024')
        a('s_add_u32 s45, s45, 2')
        a('s_cmp_lt_u32 s45, 32')
        a('s_cbranch_scc1 CZ_l')
    else:
        gate(a, 'CS', 8, lambda: poll(a, 'CS_poll', [fl_], 24, 4, 23), vCt, 23)
    st(a, 4)
    assert OPT['lazy'] & 4
    wpoll('COL_wl')
    wload()
    for rd in range(1, 2):
        for hf in range(4):
            a('s_add_u32 m0, s21, %d' % (rd * 65536 + hf * 4096))
            a('s_add_u32 s22, s20, %d' % (rd * 2 * ZS() + hf * 4096))
            for i in range(4):
                a('buffer_load_dwordx4 v%d, s[28:31], s22 offen offset:%d sc1 lds' % (vW, i * 1024))
    st(a, 5)
    a('s_barrier')
    a('s_branch %s' % ('HCOL_in' if OPT['cph'] and not OPT['cpr'] else 'COL_in'))
    def round_body(a):
        a.label('COL_round')
        for k in range(OPT['opf'] - OPT['opl'], OPT['opf']): opf(k)
        lds_spin(a, 'COL_s1', vCt, 16, 4, vSp, 23)
        a.label('COL_in')
        cs(1)
        for q in range(4):
            a('ds_read_b128 %s, v%d offset:%d' % (vr(IN + 4 * q, 4), vI, q * 8192))
        for q in range(4):
            a('ds_read_b128 %s, v%d offset:%d' % (vr(IN + 16 + 4 * q, 4), vI1, q * 8192))
        count(0, vCg)
        a('s_waitcnt lgkmcnt(1)')
        cs(2)
        fft_pair(a)
        cs(3)
        a('s_waitcnt vmcnt(16)')
        a('s_cmp_eq_u32 s%d, 0' % sRd)
        a('s_cbranch_scc1 COL_w1')
        a('s_waitcnt vmcnt(%d)' % (2 * OPT['opf']))
        a.label('COL_w1')
        pointwise(a)
        cs(4)
        a('s_add_u32 s%d, s%d, 2' % (sK, sK))
        a('s_cmp_lg_u32 s%d, 0' % sRd)
        a('s_cbranch_scc1 COL_nw')
        a('s_cmp_eq_u32 s%d, 0' % sB)
        a('s_cbranch_scc1 COL_nz')
        a('s_waitcnt vmcnt(0)')
        count(16)
        a.label('COL_nz')
        wload()
        for k in range(OPT['opf'] - OPT['opl']): opf(k)
        a('s_branch COL_nw2')
        a.label('COL_nw')
        a('v_subrev_u32 v%d, 8, v%d' % (5, vCg))
        lds_spin(a, 'COL_s2', 5, 4, 4, vSp, 23)
        trreads(WR)
        a.label('COL_nw2')
        a('s_cmp_eq_u32 s%d, 0' % sRd)
        t = Asm(); fft_pair(t)
        mi = [k for k, l in enumerate(t.lines) if 'v_mfma' in l]
        at = {mi[3 + 3 * it]: it for it in range(8)}
        for k, l in enumerate(t.lines):
            a.raw(l)
            if k in at:
                it = at[k]
                a('s_cbranch_scc1 COL_ns%d' % it)
                a('s_waitcnt lgkmcnt(%d)' % (14 - 2 * it))
                a('buffer_store_dwordx4 %s, v%d, s[28:31], s%d offen %s' % (vr(WR + 4 * it, 4), vSt, 32 + it, SC))
                a.label('COL_ns%d' % it)
        lds_spin(a, 'COL_s3', vCg, 0, 4, vSp, 23)
        a('s_cmp_lg_u32 s%d, 2' % sK)
        a('s_cbranch_scc1 COL_nhalf')
        for i in range(64):
            a('v_mul_f32 v%d, 0.5, v%d' % (T1 + i, T1 + i))
        a.label('COL_nhalf')
        cs(5)
        if OPT['cprio']: a('s_setprio 1')
        for rho in range(2):
            for g in range(4):
                t = IN + 16 * rho + 4 * g
                for i in range(4):
                    a('v_cvt_pk_bf16_f32 v%d, v%d, v%d' % (t + i, T1 + 16 * rho + 4 * g + i, T2 + 16 * rho + 4 * g + i))
                a('ds_write_b128 v%d, %s offset:%d' % (vSW, vr(t, 4), rho * 4096 + g * 1024))
        a('s_setprio 0')
        count(4, vCg)
        cs(8)
        a('s_cmp_lg_u32 s%d, 0' % sRd)
        a('s_cbranch_scc1 COL_last')
        st(a, 6)
        a('s_mov_b32 s%d, 1' % sRd)
        for v in (vI, vI1, vSW):
            a('v_add_u32 v%d, 0x10000, v%d' % (v, v))
        a('v_add_u32 v%d, 8, v%d' % (vCg, vCg))
        a('s_branch COL_round')
    mark = len(a.lines); round_body(a)
    t0_ = Asm(); t0_.lines = a.lines[mark:]; del a.lines[mark:]
    if OPT['cph']:
        import re
        hi = True
        labs = [l.strip()[:-1] for l in t0_.lines if l.strip().endswith(':') and not l.startswith(' ')]
        skip = True
        for l in t0_.lines:
            if l.strip() == 'COL_in:': skip = False
            if skip: continue
            if OPT['cpe'] == 1 and l.strip() == 'COL_nw2:': hi = False
            if OPT['cpe'] == 2 and l.strip() == 'COL_w1:': hi = False
            m = re.match(r'\s*s_setprio (\d)', l)
            if m and hi: l = '    s_setprio %d' % (int(m.group(1)) + OPT['cph'])
            for lb in labs:
                if lb != 'COL_round': l = re.sub(r'\b%s\b' % lb, 'H' + lb, l)
            if l.strip() == 's_branch COL_round': a('s_setprio 0')
            a.raw(l)
            if l.strip() == 'HCOL_in:': a('s_setprio %d' % OPT['cph'])
            if not hi and l.strip() in ('HCOL_nw2:', 'HCOL_w1:'): a('s_setprio 0')
    for l in t0_.lines: a.raw(l)
    a.label('COL_last')
    for v in (vRe, vRo):
        a('v_add_u32 v%d, 0x10000, v%d' % (v, v))
    lds_spin(a, 'COL_s4', vCg, 4, 4, vSp, 23)
    cs(9)
    trreads(T1)
    for it in range(8):
        a('s_waitcnt lgkmcnt(%d)' % (14 - 2 * it))
        a('buffer_store_dwordx4 %s, v%d, s[28:31], s%d offen offset:256 %s' % (vr(T1 + 4 * it, 4), vSt, 32 + it, SC))
    cs(10)
    a.label('COL_done')
    st(a, 7)
    fc = lambda pfx: arrive(a, pfx, 24, vCt, 28, FC - 224 * 4, 7, 22)
    a('s_cmp_ge_u32 s%d, 4' % sW)
    a('s_cbranch_scc1 COL_Lx')
    count(20)
    a('s_or_b32 s22, s%d, s%d' % (sC, sW))
    a('s_cmp_eq_u32 s22, 0')
    a('s_cbranch_scc1 COL_ny')
    a('s_waitcnt vmcnt(0)')
    fc('COL_fr')
    if OPT['ptc'] & 16:
        a('s_lshl_b32 s14, s%d, 2' % sC)
        a('s_add_u32 s14, s14, s%d' % sW)
        a('s_lshl_b32 s14, s14, 11')
        a('s_add_u32 s14, s14, 0x%x' % (FP - 2048))
        a('v_and_b32 v24, 31, v%d' % cL)
        a('v_lshlrev_b32 v24, 7, v24')
        a('buffer_load_dword v15, v24, s[28:31], s14 offen sc1')
    if OPT['cpf']:
        a.comment('the weight panel of the second product is touched while the first product drains')
        n = OPT['cpf']
        a('s_load_dwordx2 s[6:7], s[0:1], %d' % KA_W2)
        g2_ids(a, 13, 14)
        a('s_mul_i32 s14, s14, %d' % (1792 * 4096))
        a('s_lshl_b32 s13, s13, 8')
        a('s_add_u32 s13, s13, s14')
        if n == 1: a('s_lshl_b32 s14, s%d, 2' % sDt)
        else: a('s_lshl_b32 s14, s%d, 2' % sJ)
        a('s_add_u32 s14, s14, s%d' % sW)
        a('s_mul_i32 s14, s14, %d' % (56 * n * 4096))
        a('s_add_u32 s13, s13, s14')
        a('v_lshrrev_b32 v24, 1, v%d' % cL)
        a('v_and_b32 v25, 1, v%d' % cL)
        a('v_lshlrev_b32 v25, 7, v25')
        a('v_min_u32 v26, %d, v24' % (23 if n == 1 else 15))
        a('v_lshl_add_u32 v24, v24, 12, v25')
        a('v_lshl_add_u32 v26, v26, 12, v25')
        a('s_waitcnt lgkmcnt(0)')
        srd_off(a, 32, 6, 7, 0, 3584 * 4096)
        for i in range(2 * n):
            a('buffer_load_dword v15, v%d, s[32:35], s13 offen' % (26 if i == 2 * n - 1 else 24))
            if i < 2 * n - 1: a('s_add_u32 s13, s13, %d' % (32 * 4096))
    a('s_mov_b32 s24, 0')
    a('s_branch G2_R2')
    a.label('COL_ny')
    a('s_mov_b32 s%d, 512' % sK)
    a('v_lshlrev_b32 v%d, 5, v%d' % (vI, cL))
    a('s_mov_b32 s25, 0x%x' % ZN)
    a('s_add_u32 s26, s25, 4096')
    for p in range(2):
        for q in range(4):
            a('buffer_load_dwordx4 %s, v%d, s[28:31], s%d offen offset:%d sc1' % (vr(IN + 16 * p + 4 * q, 4), vI, 25 + (q >> 1), (q & 1) * 2048 + p * 16))
    a('s_waitcnt vmcnt(8)')
    fc('COL_fn')
    a('s_waitcnt vmcnt(0)')
    a('v_mov_b32 v%d, v%d' % (WR, IN))
    a('v_mov_b32 v%d, v%d' % (WR + 1, IN + 1))
    wpoll('COL_wn')
    a('v_mov_b32 v%d, v%d' % (IN, WR))
    a('v_mov_b32 v%d, v%d' % (IN + 1, WR + 1))
    wload()
    lds_spin(a, 'COL_s5', vCt, 48 + 16 + 12, 4, vSp, 23)
    fft_pair(a)
    a('s_waitcnt vmcnt(0)')
    pointwise(a)
    fft_pair(a)
    a('v_lshlrev_b32 v%d, 3, v%d' % (vI, vC))
    a('v_lshl_add_u32 v%d, v%d, 10, v%d' % (vI, vH, vI))
    a('s_mov_b32 s25, 0x%x' % YN)
    a('s_add_u32 s26, s25, 4096')
    for i in range(16):
        t = IN + 2 * i
        a('v_mul_f32 v%d, 0.5, v%d' % (t, T1 + i))
        a('v_mul_f32 v%d, 0.5, v%d' % (t + 1, T2 + i))
        a('buffer_store_dwordx2 %s, v%d, s[28:31], s%d offen offset:%d %s' % (vr(t, 2), vI, 25 + (i >> 3), (8 * ((i >> 2) & 1) + (i & 3)) * 256, SC))
    a('s_mov_b32 s24, 0x%x' % FN)
    a('s_branch G2_R')
    a.label('COL_Lx')
    g2_lsetup(a, 'G2b')
    lds_spin(a, 'COL_s6', vCt, 20, 4, vSp, 23)
    vm = VM(a)
    for t in range(3): issueA(vm, 'g2', t)
    a('s_waitcnt vmcnt(12)')
    if OPT['lst'] == 'x': st(a, 10)
    fc('COL_fl')
    if OPT['cx'] & 1:
        a('s_add_u32 s18, s42, %d' % C2RS)
        a('v_lshl_add_u32 v25, v%d, 4, s18' % vL)
        for i in range(4): a('ds_read_b128 %s, v25 offset:%d' % (vr(72 + 4 * i, 4), i * 1024))
        a('s_waitcnt lgkmcnt(0)')
    else: x_early(vm, 'x')
    a('v_mov_b32 v%d, %d' % (vCT, CTL))
    a('v_mov_b32 v%d, 1' % (vCT + 1))
    a('s_branch G2_L')

def gen(a):
    global C2R
    C2R = c2r_parts(a)
    kernel_begin(a, NAME)
    a('s_cmp_ge_u32 s2, 256')
    a('s_cbranch_scc1 END')
    st(a, 0)
    a('s_load_dwordx4 s[4:7], s[0:1], %d' % KA_X)
    a('s_load_dwordx2 s[8:9], s[0:1], %d' % KA_WI)
    a('s_load_dwordx2 s[10:11], s[0:1], %d' % KA_WS)
    a('s_load_dwordx4 s[44:47], s[0:1], %d' % KA_W1)
    a('v_lshrrev_b32 v%d, 6, v0' % vA)
    a('v_and_b32 v%d, 63, v0' % vL)
    a('v_readfirstlane_b32 s%d, v%d' % (sW, vA))
    a('v_lshlrev_b32 v%d, 4, v%d' % (vA, vL))
    a('v_lshrrev_b32 v%d, 4, v%d' % (vG, vL))
    a('v_bfe_u32 v%d, v%d, 2, 2' % (vR4, vL))
    a('v_and_b32 v%d, 3, v%d' % (vCC, vL))
    a('s_and_b32 s%d, s2, 7' % sX)
    a('s_lshr_b32 s%d, s2, 5' % sI)
    a('s_bfe_u32 s%d, s2, 0x20003' % sJ)
    a('s_lshr_b32 s13, s%d, 1' % sX)
    a('s_mul_i32 s%d, s13, 7' % sFt)
    a('s_add_u32 s%d, s%d, s%d' % (sFt, sFt, sI))
    a('s_and_b32 s13, s%d, 1' % sX)
    a('s_lshl_b32 s%d, s13, 2' % sDt)
    a('s_add_u32 s%d, s%d, s%d' % (sDt, sDt, sJ))
    a('s_add_u32 s%d, s%d, s%d' % (sPhi, sI, sJ))
    a('s_and_b32 s%d, s%d, %d' % (sPhi, sPhi, min(OPT['P'], 4) - 1))
    if OPT['P'] == 8:
        a('s_lshl_b32 s13, s13, 2')
        a('s_add_u32 s%d, s%d, s13' % (sPhi, sPhi))
    a('s_cmp_ge_u32 s%d, 4' % sW)
    a('s_cbranch_scc1 L_entry')
    rows(a)
    fin(a)
    a('s_cmp_ge_u32 s2, 224')
    a('s_cbranch_scc1 COL_j')
    g1_compute(a)
    a.label('G2_R')
    g2_compute(a)
    a.label('L_entry')
    l_phase_a(a)
    vm = g1_loader(a)
    g2_loader(a, vm)
    col(a)
    a.label('END')
    a('s_endpgm')

def build(out, **opt):
    global OPT
    save = dict(OPT); OPT.update(opt)
    k = Asm()
    gen(k)
    lines, n = hazard.fix(k.lines)
    head = Asm()
    head.raw('; @launch grid=(256,1,1) block=(512,1,1) lds=%d' % LDS_BYTES)
    head.raw('.amdgcn_target "amdgcn-amd-amdhsa--gfx950"')
    tail = Asm()
    tables.emit(tail)
    kernel_desc(tail, NAME, 256, 102)
    open(out, 'w').write(head.text() + '\n'.join(lines) + '\n' + tail.text())
    print(out, 'pads', n, 'instr', sum(1 for l in lines if l.startswith('    ') and not l.strip().startswith(';')))
    OPT = save

if __name__ == '__main__':
    DIAG[0] = 'diag' in sys.argv
    build('fused_d.s' if DIAG[0] else 'fused.s')
```

```python
import sys
from gen_f import *
import gen_f
DIAG[0] = True
for spec in sys.argv[1:]:
    name, _, o = spec.partition(':')
    opt = {}
    for kv in o.split(','):
        if kv:
            k, v = kv.split('='); opt[k] = int(v) if v.lstrip('-').isdigit() else v
    DIAG[0] = not opt.pop('nodiag', 0)
    build(name + '.s', **opt)
```
